```python
import torch

def _softmax(x, axis=-1):
    return torch.softmax(x, dim=axis)
def _gelu(x):
    return torch.nn.functional.gelu(x, approximate="tanh")
def _silu(x):
    return torch.nn.functional.silu(x)
def _sigmoid(x):
    return torch.sigmoid(x)
def _layernorm(x, axis=-1, eps=1e-5):
    m = x.mean(dim=axis, keepdim=True)
    v = x.var(dim=axis, keepdim=True, unbiased=False)
    return (x - m) / torch.sqrt(v + eps)
def _scatter_add(tgt, idx, src, axis=0):
    return tgt.clone().index_add_(axis, idx, src)
def _segment_sum(src, seg, n):
    out = torch.zeros((n,) + src.shape[1:], dtype=src.dtype)
    return out.index_add_(0, seg, src)
def _pad(x, pw):
    flat = tuple(v for pair in reversed(pw) for v in pair)
    return torch.nn.functional.pad(x, flat)

kernel_name = 'recurrent_scan__grouped_kv_mqa__glu_gated_geglu__prompt'

def setup_inputs():

    _w = (lambda a: (lambda t: t.to(torch.bfloat16) if t.is_floating_point() else t)(torch.as_tensor(a)))
    def _A_setup():
        B, S, D, H = 1, 2048, 512, 32
        Dh = D // H
        return {
            "x": _w((lambda *s: torch.randn(*s, dtype=torch.bfloat16) * 0.05)(B, S, D)),
            "wq": _w((lambda *s: torch.randn(*s, dtype=torch.bfloat16) * 0.2)(D, H * Dh)),
            "wk": _w((lambda *s: torch.randn(*s, dtype=torch.bfloat16) * 0.2)(D, Dh)),
            "wv": _w((lambda *s: torch.randn(*s, dtype=torch.bfloat16) * 0.2)(D, Dh)),
            "wo": _w((lambda *s: torch.randn(*s, dtype=torch.bfloat16) * 0.2)(H * Dh, D)),
        }
    _A_in = _A_setup()

    def _B_setup():
        B, S, Dm, Df = 1, 2048, 512, 1792
        return {
            "x": _w((lambda *s: torch.randn(*s, dtype=torch.bfloat16) * 0.05)(B, S, Dm)),
            "w_gate": _w((lambda *s: torch.randn(*s, dtype=torch.bfloat16) * 0.1)(Dm, Df) * (Dm ** -0.5)),
            "w_up": _w((lambda *s: torch.randn(*s, dtype=torch.bfloat16) * 0.1)(Dm, Df) * (Dm ** -0.5)),
            "w_down": _w((lambda *s: torch.randn(*s, dtype=torch.bfloat16) * 0.1)(Df, Dm) * (Df ** -0.5)),
        }
    _B_in = _B_setup()

    return {
        "A_x": _A_in["x"],
        "A_wq": _A_in["wq"],
        "A_wk": _A_in["wk"],
        "A_wv": _A_in["wv"],
        "A_wo": _A_in["wo"],
        "B_x": _B_in["x"],
        "B_w_gate": _B_in["w_gate"],
        "B_w_up": _B_in["w_up"],
        "B_w_down": _B_in["w_down"],
    }

def reference(A_x, A_wq, A_wk, A_wv, A_wo, B_x, B_w_gate, B_w_up, B_w_down):
    def _A_ref(x, wq, wk, wv, wo):
        B, S, D = x.shape
        H = 32
        Dh = D // H
        q = (lambda x, *d: x.permute(*d))((x @ wq).reshape(B, S, H, Dh), 0, 2, 1, 3)
        k = x @ wk
        v = x @ wv
        scores = torch.einsum("bhqd,bkd->bhqk", q, k) * (Dh ** -0.5)
        p = _softmax(scores, axis=-1)
        o = torch.einsum("bhqk,bkd->bhqd", p, v)
        return (lambda x, *d: x.permute(*d))(o, 0, 2, 1, 3).reshape(B, S, H * Dh) @ wo

    def _B_ref(x, w_gate, w_up, w_down):
        g = torch.einsum("bsd,df->bsf", x, w_gate)
        u = torch.einsum("bsd,df->bsf", x, w_up)
        h = _gelu(g) * u
        return torch.einsum("bsf,fd->bsd", h, w_down)

    x = A_x
    xn = _layernorm(x, axis=-1)
    s = _A_ref(xn, A_wq, A_wk, A_wv, A_wo)
    g = _silu(_B_ref(xn, B_w_gate, B_w_up, B_w_down))
    return x + s * g
```

```python
class Asm:
    def __init__(self):
        self.lines = []
        self.uid = 0
    def __call__(self, s=""):
        for l in s.split("\n"):
            l = l.strip()
            if not l: continue
            if l.endswith(":") or l.startswith("."):
                self.lines.append(l)
            else:
                self.lines.append("    " + l)
    def c(self, s):
        self.lines.append("    ; " + s)
    def label(self, name):
        self.lines.append(name + ":")
    def new(self, base):
        self.uid += 1
        return f"L_{base}_{self.uid}"
    def text(self):
        return "\n".join(self.lines) + "\n"

def vr(a, n=1):
    return f"v{a}" if n == 1 else f"v[{a}:{a+n-1}]"
def sr(a, n=1):
    return f"s{a}" if n == 1 else f"s[{a}:{a+n-1}]"

def srd(e, d, base, nbytes):
    e(f"s_mov_b32 s{d}, s{base}")
    e(f"s_mov_b32 s{d+1}, s{base+1}")
    e(f"s_mov_b32 s{d+2}, {hex(nbytes)}")
    e(f"s_mov_b32 s{d+3}, 0x00020000")

def kd(name, vgpr, sgpr=96):
    accum = min(256, (vgpr + 3) // 4 * 4)
    return f""".p2align 6
.amdhsa_kernel {name}
  .amdhsa_next_free_vgpr {vgpr}
  .amdhsa_next_free_sgpr {sgpr}
  .amdhsa_accum_offset {accum}
  .amdhsa_group_segment_fixed_size 0
  .amdhsa_kernarg_size 96
  .amdhsa_user_sgpr_count 2
  .amdhsa_user_sgpr_kernarg_segment_ptr 1
  .amdhsa_system_sgpr_workgroup_id_x 1
.end_amdhsa_kernel
"""
import struct
def f2h(x):
    return hex(struct.unpack("<I", struct.pack("<f", x))[0])
```

```python
import sys, math
from asmlib import *

NAME = "recurrent_scan__grouped_kv_mqa__glu_gated_geglu__prompt"
WS_Q, WS_O, WS_K, WS_V, WS_H, WS_G = 0, 0x200000, 0x400000, 0x410000, 0x500000, 0xC00000
WS_SIZE = 0x10000000
VT = 1056
QSCALE = 0.25 * math.log2(math.e)
OFF = 80.0
sX, sWQ, sWK, sWV, sWO, sWG, sWU, sWD, sOUT, sDBG, sWS = 8, 10, 12, 14, 16, 20, 22, 24, 26, 28, 30

def prologue(e, name, done):
    e(f".globl {name}\n.p2align 8\n.type {name},@function\n{name}:")
    e("s_cmp_ge_u32 s2, 256")
    e(f"s_cbranch_scc1 {done}")
    e("s_load_dwordx8 s[8:15], s[0:1], 0")
    e("s_load_dwordx16 s[16:31], s[0:1], 32")
    e("v_lshrrev_b32 v1, 6, v0")
    e("v_and_b32 v0, 63, v0")
    e("v_readfirstlane_b32 s3, v1")

MFMA = "v_mfma_f32_32x32x16_bf16"
SMF = "v_smfmac_f32_32x32x32_bf16"

def k1(e, cfg):
    XN, WR, WKV = 0, 32768, 131072
    NSLOT = 6
    done = "L_k1_done"
    prologue(e, "p1_kernel", done)
    e("s_and_b32 s6, s2, 7\ns_lshr_b32 s7, s2, 3")
    if cfg.get("map", "8x4") == "8x4":
        e("s_and_b32 s4, s6, 1\ns_lshl_b32 s4, s4, 3\ns_and_b32 s60, s7, 7\ns_add_u32 s4, s4, s60")
        e("s_lshr_b32 s5, s6, 1\ns_lshl_b32 s5, s5, 2\ns_lshr_b32 s60, s7, 3\ns_add_u32 s5, s5, s60")
    else:
        e("s_and_b32 s4, s6, 3\ns_lshl_b32 s4, s4, 2\ns_and_b32 s60, s7, 3\ns_add_u32 s4, s4, s60")
        e("s_lshr_b32 s5, s6, 2\ns_lshl_b32 s5, s5, 3\ns_lshr_b32 s60, s7, 2\ns_add_u32 s5, s5, s60")
    e("s_cmp_ge_u32 s3, 4")
    e("s_cbranch_scc1 L_k1_compute")
    X = 64
    def xr(rg, c): return X + rg * 32 + c * 4
    e("v_lshrrev_b32 v1, 3, v0    ; rho")
    e("v_and_b32 v2, 7, v0        ; chunk")
    e("s_lshl_b32 s60, s4, 7\ns_lshl_b32 s61, s3, 5\ns_add_u32 s60, s60, s61")
    e("v_add_u32 v3, s60, v1\nv_lshlrev_b32 v3, 10, v3\nv_lshl_add_u32 v3, v2, 4, v3")
    e("s_mov_b32 s52, 0\ns_mov_b32 s53, 8192\ns_mov_b32 s54, 16384\ns_mov_b32 s55, 24576")
    e("s_waitcnt lgkmcnt(0)")
    srd(e, 32, sX, 2097152)
    for rg in range(4):
        for c in range(8):
            e(f"buffer_load_dwordx4 {vr(xr(rg,c),4)}, v3, s[32:35], s{52+rg} offen offset:{c*128}")
    e("s_lshr_b32 s62, s3, 1      ; mat\ns_and_b32 s63, s3, 1       ; line")
    e("s_cmp_ge_u32 s5, 14")
    e("s_cbranch_scc1 L_k1_hq")
    e("s_cmp_eq_u32 s62, 0")
    e(f"s_cselect_b32 s36, s{sWG}, s{sWU}\ns_cselect_b32 s37, s{sWG+1}, s{sWU+1}")
    e("s_mov_b32 s38, 1835008\ns_mov_b32 s64, 3584\ns_lshl_b32 s65, s5, 8")
    e("s_branch L_k1_hw")
    e("L_k1_hq:")
    e(f"s_mov_b32 s36, s{sWQ}\ns_mov_b32 s37, s{sWQ+1}\ns_mov_b32 s38, 524288\ns_mov_b32 s64, 1024")
    e("s_sub_u32 s65, s5, 14\ns_lshl_b32 s65, s65, 9\ns_lshl_b32 s60, s62, 8\ns_add_u32 s65, s65, s60")
    e("L_k1_hw:")
    e("s_mov_b32 s39, 0x00020000")
    e("s_lshl_b32 s60, s63, 7\ns_add_u32 s65, s65, s60")
    e("s_lshl_b32 s60, s62, 2")
    e("v_and_b32 v4, 2, v1\nv_or_b32 v4, s60, v4\nv_xor_b32 v4, v4, v2\nv_lshlrev_b32 v4, 4, v4")
    e("v_mul_lo_u32 v7, v1, s64\nv_add3_u32 v4, v4, v7, s65")
    e("s_lshl_b32 s57, s64, 3\ns_sub_u32 s56, 0, s57")
    e(f"s_lshl_b32 s58, s3, 12\ns_add_u32 s58, s58, {WR}")
    def wdma(stage):
        slot = stage % NSLOT
        for q in range(4):
            e(f"s_add_u32 m0, s58, {slot*16384 + q*1024}")
            e("s_add_u32 s56, s56, s57")
            e("buffer_load_dwordx4 v4, s[36:39], s56 offen lds")
    for st in range(NSLOT - 1):
        wdma(st)
    nW = 4 * (NSLOT - 1)
    e("s_lshl_b32 s60, s3, 12")
    e("v_lshrrev_b32 v5, 1, v1\nv_xor_b32 v5, v5, v2\nv_lshlrev_b32 v5, 4, v5\nv_lshl_add_u32 v5, v1, 7, v5\nv_add_u32 v5, s60, v5")
    e("v_xor_b32 v6, 64, v5")
    e("s_mov_b32 s59, 0xffff0000\ns_mov_b32 s66, 0x3f803f80")
    e("v_and_b32 v24, 31, v0\nv_lshrrev_b32 v25, 5, v0\nv_bfe_u32 v26, v0, 1, 3\nv_xor_b32 v26, v26, v25\nv_lshlrev_b32 v26, 4, v26")
    e("v_lshl_add_u32 v26, v24, 7, v26\nv_add_u32 v28, s60, v26\nv_xor_b32 v29, 32, v28\nv_xor_b32 v30, 64, v28\nv_xor_b32 v31, 96, v28")
    e("v_bfe_u32 v26, v0, 4, 1\nv_lshlrev_b32 v26, 14, v26\nv_lshl_add_u32 v26, v25, 8, v26\nv_and_b32 v27, 15, v0\nv_lshl_add_u32 v27, v27, 3, v26")
    e(f"v_add_u32 v27, {WKV}, v27")
    for rg in range(4):
        e(f"v_mov_b32 v{8+rg}, 0\nv_mov_b32 v{12+rg}, 0")
    for rg in range(4):
        for c in range(8):
            if c % 2 == 0:
                e(f"s_waitcnt vmcnt({nW + 32 - (rg*8 + c + 2)})")
            for r in range(4):
                e(f"v_dot2c_f32_bf16 v{8+rg}, s66, v{xr(rg,c)+r}")
                e(f"v_dot2c_f32_bf16 v{12+rg}, v{xr(rg,c)+r}, v{xr(rg,c)+r}")
    e("s_nop 2")
    for dpp in ("quad_perm:[1,0,3,2]", "quad_perm:[2,3,0,1]", "row_half_mirror"):
        for k in range(8):
            e(f"v_add_f32_dpp v{8+k}, v{8+k}, v{8+k} {dpp} row_mask:0xf bank_mask:0xf")
    e(f"s_mov_b32 s60, {f2h(1/512)}\ns_mov_b32 s61, {f2h(1e-5)}")
    for rg in range(4): e(f"v_mul_f32 v{8+rg}, s60, v{8+rg}")
    for rg in range(4): e(f"v_mul_f32 v{16+rg}, v{8+rg}, v{8+rg}")
    for rg in range(4): e(f"v_fma_f32 v{16+rg}, v{12+rg}, s60, -v{16+rg}")
    for rg in range(4): e(f"v_max_f32 v{16+rg}, 0, v{16+rg}")
    for rg in range(4): e(f"v_add_f32 v{16+rg}, s61, v{16+rg}")
    for rg in range(4): e(f"v_rsq_f32 v{16+rg}, v{16+rg}")
    e("s_nop 0")
    for rg in range(4): e(f"v_mul_f32 v{20+rg}, v{8+rg}, v{16+rg}")
    def norm(rg, c):
        b = xr(rg, c)
        for r in range(4):
            e(f"v_lshlrev_b32 v{32+2*r}, 16, v{b+r}\nv_and_b32 v{33+2*r}, s59, v{b+r}")
        for r in range(8):
            e(f"v_fma_f32 v{32+r}, v{32+r}, v{16+rg}, -v{20+rg}")
        for r in range(4):
            e(f"v_cvt_pk_bf16_f32 v{b+r}, v{32+2*r}, v{33+2*r}")
        e(f"ds_write_b128 v{5+(rg&1)}, {vr(b,4)} offset:{XN + (c&1)*16384 + rg*1024}")
    for rg in range(4): norm(rg, 0)
    KVACC, KVB, KVA = 192, 208, 216
    for t in range(16):
        issued = min(16, t + NSLOT - 1)
        e(f"s_waitcnt vmcnt({4*(issued - t - 1)}) lgkmcnt(0)")
        e("s_barrier")
        skip = e.new("nokv")
        e(f"s_cmp_lg_u32 s5, 14\ns_cbranch_scc1 {skip}")
        for s2 in range(2):
            s = 2*t + s2
            e(f"ds_read_b128 {vr(KVB+4*s2,4)}, v{28+(s&3)} offset:{XN + ((s>>2)&1)*16384}")
            for tp in range(2):
                e(f"ds_read_b64_tr_b16 {vr(KVA+4*s2+2*tp,2)}, v27 offset:{s*512 + tp*128}")
        e(f"{skip}:")
        if t + NSLOT - 1 < 16: wdma(t + NSLOT - 1)
        c = (t >> 1) + 1
        if c < 8:
            for rg in (2*(t&1), 2*(t&1)+1): norm(rg, c)
        skip = e.new("nokv")
        e(f"s_cmp_lg_u32 s5, 14\ns_cbranch_scc1 {skip}")
        e("s_waitcnt lgkmcnt(0)")
        for s2 in range(2):
            cc = "0" if (t == 0 and s2 == 0) else vr(KVACC,16)
            e(f"{MFMA} {vr(KVACC,16)}, {vr(KVA+4*s2,4)}, {vr(KVB+4*s2,4)}, {cc}")
        e(f"{skip}:")
    e(f"s_cmp_lg_u32 s5, 14\ns_cbranch_scc1 {done}")
    srd(e, 40, sWS, WS_SIZE)
    e("s_lshl_b32 s60, s4, 2\ns_add_u32 s60, s60, s3")
    e(f"s_lshl_b32 s61, s60, 10\ns_add_u32 s61, s61, {WS_K}")
    e(f"s_mul_i32 s62, s60, {VT}\ns_add_u32 s62, s62, {WS_V}")
    e("v_lshlrev_b32 v32, 4, v0")
    e("s_lshl_b32 s63, s3, 10")
    e("v_bfe_u32 v33, v0, 3, 2\nv_lshlrev_b32 v33, 8, v33\nv_lshl_add_u32 v33, v25, 6, v33\nv_and_b32 v34, 7, v0\nv_lshl_add_u32 v33, v34, 1, v33\nv_add_u32 v33, s63, v33")
    e("v_add_u32 v35, s63, v32")
    e("v_mul_u32_u24 v36, 528, v25\nv_lshl_add_u32 v37, v24, 4, v36")
    e("v_mov_b32 v40, s66\nv_mov_b32 v41, s66\nv_mov_b32 v42, s66\nv_mov_b32 v43, s66")
    e("s_nop 4")
    for r in range(8):
        e(f"v_cvt_pk_bf16_f32 v{44+r}, v{KVACC+2*r}, v{KVACC+2*r+1}")
    e("buffer_store_dwordx4 v[44:47], v32, s[40:43], s61 offen")
    for r in range(4):
        d0 = (2*r & 3) + 8*((2*r) >> 2)
        e(f"ds_write_b16 v33, v{48+r} offset:{XN + d0*16}")
        e(f"ds_write_b16_d16_hi v33, v{48+r} offset:{XN + (d0+1)*16}")
    e(f"ds_read_b128 v[52:55], v35 offset:{XN}")
    e("buffer_store_dwordx4 v[40:43], v36, s[40:43], s62 offen offset:512")
    e("s_waitcnt lgkmcnt(0)")
    e("buffer_store_dwordx4 v[52:55], v37, s[40:43], s62 offen")
    e("s_endpgm")
    e("L_k1_compute:")
    e("s_setprio 1")
    e("s_sub_u32 s3, s3, 4")
    ACC, FB = 64, 192
    def acc(tt, gi): return ACC + (tt*2 + gi)*16
    def fb(b, tt): return FB + b*24 + tt*4
    def fa(b, gi): return FB + b*24 + 16 + gi*4
    e("v_and_b32 v10, 31, v0\nv_lshrrev_b32 v11, 5, v0\nv_bfe_u32 v12, v0, 1, 3\nv_xor_b32 v12, v12, v11\nv_lshlrev_b32 v12, 4, v12")
    e("v_lshl_add_u32 v2, v10, 7, v12\nv_xor_b32 v3, 32, v2\nv_xor_b32 v4, 64, v2\nv_xor_b32 v5, 96, v2")
    e("v_bfe_u32 v12, v0, 4, 1      ; mat\nv_bfe_u32 v13, v0, 2, 2      ; r\nv_and_b32 v14, 3, v0   ; c")
    e("s_and_b32 s60, s3, 1\ns_lshl_b32 s60, s60, 1   ; g&3 base\ns_lshr_b32 s61, s3, 1\ns_lshl_b32 s61, s61, 12")
    e(f"s_add_u32 s61, s61, {WR}")
    e("v_lshrrev_b32 v15, 1, v13\nv_lshl_or_b32 v15, v12, 1, v15\nv_xor_b32 v15, s60, v15\nv_lshlrev_b32 v15, 5, v15")
    e("v_lshl_add_u32 v15, v14, 3, v15\nv_lshl_add_u32 v15, v13, 7, v15\nv_lshl_add_u32 v15, v11, 10, v15\nv_lshl_add_u32 v15, v12, 13, v15")
    e("v_add_u32 v6, s61, v15\nv_xor_b32 v7, 32, v6\nv_add_u32 v8, 49152, v6\nv_add_u32 v9, 49152, v7")
    e("s_waitcnt lgkmcnt(0)")
    e("s_cmp_lg_u32 s5, 14\ns_cbranch_scc1 L_k1_nokvdma")
    e("s_cmp_lt_u32 s3, 2")
    e(f"s_cselect_b32 s44, s{sWK}, s{sWV}\ns_cselect_b32 s45, s{sWK+1}, s{sWV+1}\ns_mov_b32 s46, 16384\ns_mov_b32 s47, 0x00020000")
    e("v_lshlrev_b32 v16, 4, v0")
    e("s_and_b32 s60, s3, 1\ns_lshl_b32 s60, s60, 13")
    e(f"s_lshl_b32 s61, s3, 13\ns_add_u32 s61, s61, {WKV}")
    for half in range(2):
        e("s_mov_b32 m0, s61\ns_nop 0")
        for q in range(4):
            e(f"buffer_load_dwordx4 v16, s[44:47], s60 offen offset:{q*1024} lds")
        if half == 0:
            e("s_add_u32 s60, s60, 4096\ns_add_u32 s61, s61, 4096")
    e("s_waitcnt vmcnt(0)")
    e("L_k1_nokvdma:")
    def reads(s):
        b = s & 1
        st = s >> 1; slot = st % NSLOT
        out = []
        for gi in range(2):
            for tp in range(2):
                out.append(f"ds_read_b64_tr_b16 {vr(fa(b,gi)+2*tp,2)}, v{6+gi+2*(slot//3)} offset:{(slot%3)*16384 + (s&1)*2048 + tp*512}")
        xr_ = [f"ds_read_b128 {vr(fb(b,tt),4)}, v{2+(s&3)} offset:{XN + ((s>>2)&1)*16384 + tt*4096}" for tt in range(4)]
        return [out[0], out[1], xr_[0], out[2], out[3], xr_[1], xr_[2], xr_[3]]
    e("s_barrier")
    for r in reads(0): e(r)
    e("s_waitcnt lgkmcnt(0)")
    for s in range(32):
        b = s & 1
        rd = reads(s+1) if s + 1 < 32 else []
        mi = 0
        for tt in range(4):
            for gi in range(2):
                cc = "0" if s == 0 else vr(acc(tt,gi),16)
                e(f"{MFMA} {vr(acc(tt,gi),16)}, {vr(fa(b,gi),4)}, {vr(fb(b,tt),4)}, {cc}")
                if mi == 0 and rd and (s+1) % 2 == 0:
                    e("s_barrier")
                if rd and mi < 4:
                    e(rd[2*mi]); e(rd[2*mi+1])
                mi += 1
        if rd: e("s_waitcnt lgkmcnt(0)")
    srd(e, 40, sWS, WS_SIZE)
    e("v_lshlrev_b32 v2, 4, v0")
    e("s_cmp_ge_u32 s5, 14\ns_cbranch_scc1 L_k1_epq")
    GA = -2*math.sqrt(2/math.pi)*math.log2(math.e); GB = GA*0.044715
    e(f"v_mov_b32 v4, {f2h(GA)}\nv_mov_b32 v5, {f2h(GA)}\nv_mov_b32 v6, {f2h(GB)}\nv_mov_b32 v7, {f2h(GB)}\nv_mov_b32 v8, 1.0\nv_mov_b32 v9, 1.0")
    e(f"s_mul_i32 s60, s4, 448\ns_lshl_b32 s61, s5, 3\ns_add_u32 s60, s60, s61\ns_lshl_b32 s61, s3, 1\ns_add_u32 s60, s60, s61\ns_lshl_b32 s60, s60, 10\ns_add_u32 s60, s60, {WS_H}")
    T = 16
    for tt in range(4):
        for gi in range(2):
            a = acc(tt, gi); o = 32 + ((tt*2+gi) & 1)*4
            P = lambda x: vr(x, 2)
            for k in range(4): e(f"v_pk_mul_f32 {P(T+2*k)}, {P(a+2*k)}, {P(a+2*k)}")
            for k in range(4): e(f"v_pk_fma_f32 {P(T+2*k)}, {P(T+2*k)}, v[6:7], v[4:5]")
            for k in range(4): e(f"v_pk_mul_f32 {P(T+2*k)}, {P(T+2*k)}, {P(a+2*k)}")
            for k in range(4):
                e(f"v_exp_f32 v{T+2*k}, v{T+2*k}\nv_exp_f32 v{T+2*k+1}, v{T+2*k+1}")
                e(f"v_pk_mul_f32 {P(a+2*k)}, {P(a+2*k)}, {P(a+8+2*k)}")
            for k in range(4): e(f"v_pk_add_f32 {P(T+2*k)}, {P(T+2*k)}, v[8:9]")
            for k in range(8): e(f"v_rcp_f32 v{T+k}, v{T+k}")
            for k in range(4): e(f"v_pk_mul_f32 {P(a+2*k)}, {P(a+2*k)}, {P(T+2*k)}")
            for k in range(4): e(f"v_cvt_pk_bf16_f32 v{o+k}, v{a+2*k}, v{a+2*k+1}")
            e(f"buffer_store_dwordx4 {vr(o,4)}, v2, s[40:43], s60 offen offset:{gi*1024}")
        if tt < 3: e(f"s_add_u32 s60, s60, {112*1024}")
    e("s_endpgm")
    e("L_k1_epq:")
    e(f"v_mov_b32 v4, {f2h(QSCALE)}\nv_mov_b32 v5, {f2h(QSCALE)}")
    e(f"s_lshl_b32 s60, s4, 7\ns_sub_u32 s61, s5, 14\ns_lshl_b32 s61, s61, 4\ns_add_u32 s60, s60, s61\ns_lshl_b32 s61, s3, 1\ns_add_u32 s60, s60, s61\ns_lshl_b32 s60, s60, 10\ns_add_u32 s60, s60, {WS_Q}")
    e("s_add_u32 s61, s60, 8192")
    for tt in range(4):
        for gi in range(2):
            a = acc(tt, gi); o = 32 + ((tt*2+gi) & 1)*8
            for k in range(8): e(f"v_pk_mul_f32 {vr(a+2*k,2)}, {vr(a+2*k,2)}, v[4:5]")
            for k in range(8): e(f"v_cvt_pk_bf16_f32 v{o+k}, v{a+2*k}, v{a+2*k+1}")
            e(f"buffer_store_dwordx4 {vr(o,4)}, v2, s[40:43], s60 offen offset:{gi*1024}")
            e(f"buffer_store_dwordx4 {vr(o+4,4)}, v2, s[40:43], s61 offen offset:{gi*1024}")
        if tt < 3: e("s_add_u32 s60, s60, 32768\ns_add_u32 s61, s61, 32768")
    e(f"{done}:")
    e("s_endpgm")

LK, LV, LG = 0, 65536, 133120
def map23(e):
    e("s_and_b32 s6, s2, 7\ns_lshr_b32 s7, s2, 3")
    e("s_lshl_b32 s4, s6, 2\ns_lshr_b32 s60, s7, 3\ns_add_u32 s4, s4, s60\ns_and_b32 s5, s7, 7")

def g_addr(e, lbase_sgpr):
    e("v_lshrrev_b32 v10, 3, v0\nv_and_b32 v11, 7, v0")
    e("s_lshl_b32 s60, s5, 7")
    e("v_lshlrev_b32 v2, 10, v10\nv_lshl_add_u32 v2, v11, 4, v2\nv_add_u32 v2, s60, v2")
    e("v_and_b32 v12, 2, v10\nv_lshlrev_b32 v12, 1, v12\nv_xor_b32 v12, v12, v11\nv_lshlrev_b32 v12, 4, v12\nv_lshl_add_u32 v3, v10, 7, v12")
    e(f"v_add_u32 v3, s{lbase_sgpr}, v3")
    e("v_bfe_u32 v12, v0, 2, 2\nv_lshrrev_b32 v13, 5, v0\nv_lshl_add_u32 v13, v13, 2, v12\nv_lshlrev_b32 v4, 7, v13")
    e("v_lshrrev_b32 v12, 1, v12\nv_lshl_add_u32 v4, v12, 6, v4\nv_bfe_u32 v12, v0, 4, 1\nv_lshl_add_u32 v4, v12, 5, v4\nv_and_b32 v12, 3, v0\nv_lshl_add_u32 v4, v12, 3, v4")
    e(f"v_add_u32 v4, s{lbase_sgpr}, v4\nv_xor_b32 v5, 64, v4")
    e("v_lshlrev_b32 v6, 4, v0")

def g_write_partials(e, ACC, wsg):
    e("v_and_b32 v10, 31, v0\nv_lshrrev_b32 v11, 5, v0\nv_and_b32 v12, 7, v0\nv_xor_b32 v12, v12, v11\nv_lshlrev_b32 v12, 4, v12")
    e(f"s_lshl_b32 s60, s{wsg}, 14")
    e("v_lshl_add_u32 v12, v10, 8, v12\nv_add_u32 v12, s60, v12\nv_xor_b32 v13, 32, v12\nv_xor_b32 v14, 64, v12\nv_xor_b32 v15, 96, v12")
    for tt in range(2):
        for mt in range(2):
            for q in range(4):
                e(f"ds_write_b128 v{12+q}, {vr(ACC+(tt*2+mt)*16+4*q,4)} offset:{tt*8192 + mt*128}")

def reduce_partials(e, tidreg, dst, tmp, base=0):
    e(f"v_lshrrev_b32 v10, 3, v{tidreg}\nv_and_b32 v11, 7, v{tidreg}\nv_lshlrev_b32 v11, 1, v11\nv_and_b32 v12, 7, v10\nv_xor_b32 v11, v11, v12")
    e("v_lshlrev_b32 v11, 4, v11\nv_lshl_add_u32 v10, v10, 8, v11\nv_xor_b32 v11, 16, v10")
    for w in range(4):
        d = dst if w == 0 else tmp + (w-1)*8
        e(f"ds_read_b128 {vr(d,4)}, v10 offset:{base + w*16384}")
        e(f"ds_read_b128 {vr(d+4,4)}, v11 offset:{base + w*16384}")
    e("s_waitcnt lgkmcnt(4)")
    for k in range(4): e(f"v_pk_add_f32 {vr(dst+2*k,2)}, {vr(dst+2*k,2)}, {vr(tmp+2*k,2)}")
    e("s_waitcnt lgkmcnt(0)")
    for k in range(4): e(f"v_pk_add_f32 {vr(tmp+8+2*k,2)}, {vr(tmp+8+2*k,2)}, {vr(tmp+16+2*k,2)}")
    for k in range(4): e(f"v_pk_add_f32 {vr(dst+2*k,2)}, {vr(dst+2*k,2)}, {vr(tmp+8+2*k,2)}")

def k2(e, cfg):
    done = "L_k2_done"
    U = cfg.get("U", 4)
    prologue(e, "p2_kernel", done)
    map23(e)
    e("v_lshlrev_b32 v6, 4, v0")
    e("s_waitcnt lgkmcnt(0)")
    srd(e, 40, sWS, WS_SIZE)
    e("s_cmp_ge_u32 s3, 4\ns_cbranch_scc1 L_k2_g")
    SA, SB, CA, CB, OA, OB, QA, QB = 16, 32, 48, 64, 80, 96, 112, 116
    KB = [120, 124]; V1 = [128, 132]; V2 = [136, 140]
    e("s_setprio 1")
    e("s_lshl_b32 s60, s4, 1\ns_and_b32 s61, s3, 1\ns_add_u32 s60, s60, s61\ns_lshl_b32 s60, s60, 5\ns_lshl_b32 s61, s5, 2\ns_add_u32 s60, s60, s61\ns_and_b32 s61, s3, 2\ns_add_u32 s60, s60, s61\ns_lshl_b32 s50, s60, 10")
    if WS_Q: e(f"s_add_u32 s60, s50, {WS_Q}")
    else: e("s_mov_b32 s60, s50")
    e(f"buffer_load_dwordx4 {vr(QA,4)}, v6, s[40:43], s60 offen")
    e(f"buffer_load_dwordx4 {vr(QB,4)}, v6, s[40:43], s60 offen offset:1024")
    e(f"s_mul_i32 s61, s3, 3072\ns_mov_b32 m0, s61\ns_add_u32 s61, s61, {WS_K}")
    for q in range(3): e(f"buffer_load_dwordx4 v6, s[40:43], s61 offen offset:{q*1024} lds")
    e("v_and_b32 v10, 31, v0\nv_lshrrev_b32 v11, 5, v0\nv_lshlrev_b32 v11, 8, v11\nv_lshl_add_u32 v11, v10, 4, v11")
    e("v_cmp_gt_u32 vcc, 16, v10\nv_mov_b32 v12, 512\nv_mov_b32 v2, 0xdddddddd")
    e(f"v_cndmask_b32 v5, v12, v11, vcc\nv_add_u32 v5, {LV}, v5")
    e("s_mov_b32 s51, 0")
    e("s_waitcnt vmcnt(0)")
    e("s_barrier")
    e(f"ds_read_b128 {vr(KB[0],4)}, v6")
    e("s_waitcnt lgkmcnt(0)")
    e(f"{MFMA} {vr(SA,16)}, {vr(KB[0],4)}, {vr(QA,4)}, 0")
    e(f"{MFMA} {vr(SB,16)}, {vr(KB[0],4)}, {vr(QB,4)}, 0")
    e("s_nop 10")
    def maxtree(S, d, first):
        if first:
            e(f"v_max3_f32 v{d}, v{S}, v{S+1}, v{S+2}")
            for k in range(3, 15, 2): e(f"v_max3_f32 v{d}, v{d}, v{S+k}, v{S+k+1}")
            e(f"v_max_f32 v{d}, v{d}, v{S+15}")
        else:
            for k in range(0, 16, 2): e(f"v_max3_f32 v{d}, v{d}, v{S+k}, v{S+k+1}")
    maxtree(SA, 8, True); maxtree(SB, 9, True)
    e(f"s_mov_b32 s52, {f2h(-OFF)}")
    e("L_k2_setmax:")
    e("v_mov_b32 v10, v8\nv_mov_b32 v11, v9\ns_nop 1\nv_permlane32_swap_b32 v8, v10\nv_permlane32_swap_b32 v9, v11\ns_nop 1")
    e("v_max_f32 v8, v8, v10\nv_max_f32 v9, v9, v11\nv_sub_f32 v8, s52, v8\nv_sub_f32 v9, s52, v9")
    e("v_mov_b32 v3, v6\nv_mov_b32 v4, v5")
    e(f"ds_read_b128 {vr(KB[0],4)}, v3")
    e(f"ds_read_b128 {vr(KB[1],4)}, v3 offset:1024")
    e(f"ds_read_b128 {vr(V1[0],4)}, v4")
    e(f"ds_read_b128 {vr(V2[0],4)}, v4 offset:528")
    e(f"ds_read_b128 {vr(V1[1],4)}, v4 offset:{VT}")
    for k in range(16): e(f"v_mov_b32 v{CA+k}, v8")
    for k in range(16): e(f"v_mov_b32 v{CB+k}, v9")
    for k in range(16): e(f"v_mov_b32 v{OA+k}, 0\nv_mov_b32 v{OB+k}, 0")
    for k in range(8): e(f"v_mov_b32 v{SB+8+k}, 0")
    for k in range(4): e(f"v_mov_b32 v{V2[1]+k}, 0")
    e("s_waitcnt lgkmcnt(0)")
    e(f"{MFMA} {vr(SA,16)}, {vr(KB[0],4)}, {vr(QA,4)}, {vr(CA,16)}")
    n1 = 8 // U
    e(f"s_cmp_eq_u32 s51, 0\ns_cselect_b32 s53, {n1}, {64//U}")
    e("s_nop 9")
    e(".p2align 6")
    e("L_k2_loop:")
    def ex(S, ks):
        for k in ks: e(f"v_exp_f32 v{S+k}, v{S+k}")
    for u in range(U):
        b = u & 1
        ex(SA, [0, 1])
        e(f"{SMF} {vr(OB,16)}, {vr(V2[b^1],4)}, {vr(SB+8,8)}, v2")
        e(f"ds_read_b128 {vr(V2[b^1],4)}, v4 offset:{(u+1)*VT + 528}")
        ex(SA, [2, 3, 4])
        e(f"{MFMA} {vr(SB,16)}, {vr(KB[b],4)}, {vr(QB,4)}, {vr(CB,16)}")
        e(f"ds_read_b128 {vr(KB[b],4)}, v3 offset:{(u+2)*1024}")
        ex(SA, [5, 6, 7, 8, 9])
        e(f"{SMF} {vr(OA,16)}, {vr(V1[b],4)}, {vr(SA,8)}, v2")
        e("s_waitcnt lgkmcnt(2)")
        if u == U-1: e("s_sub_u32 s53, s53, 1")
        ex(SA, range(10, 16))
        ex(SB, [0, 1])
        e(f"{SMF} {vr(OA,16)}, {vr(V2[b],4)}, {vr(SA+8,8)}, v2")
        if u == U-1: e("s_cmp_lg_u32 s53, 0")
        ex(SB, [2, 3, 4])
        e(f"{MFMA} {vr(SA,16)}, {vr(KB[b^1],4)}, {vr(QA,4)}, {vr(CA,16)}")
        ex(SB, [5, 6, 7, 8, 9])
        e(f"{SMF} {vr(OB,16)}, {vr(V1[b],4)}, {vr(SB,8)}, v2")
        e(f"ds_read_b128 {vr(V1[b],4)}, v4 offset:{(u+2)*VT}")
        if u == U-1:
            e(f"v_add_u32 v3, {U*1024}, v3\nv_add_u32 v4, {U*VT}, v4")
        ex(SB, range(10, 16))
    e("s_cbranch_scc1 L_k2_loop")
    e("s_cmp_lg_u32 s51, 0\ns_cbranch_scc1 L_k2_fin")
    e(f"s_mov_b32 s51, 1\ns_mov_b32 s53, {64//U - n1}\ns_barrier\ns_branch L_k2_loop")
    e("L_k2_fin:")
    e(f"{SMF} {vr(OB,16)}, {vr(V2[1],4)}, {vr(SB+8,8)}, v2")
    e(f"s_mov_b32 s54, {f2h(2.0**20)}")
    e("s_waitcnt lgkmcnt(0)")
    e("s_cmp_eq_u32 s51, 2\ns_cbranch_scc1 L_k2_store")
    e(f"v_mul_f32 v8, s54, v{OA+8}\nv_mul_f32 v8, 0, v8")
    for k in range(8): e(f"v_fma_f32 v8, v{OA+k}, 0, v8")
    e(f"v_mul_f32 v9, s54, v{OB+8}\nv_fma_f32 v8, v9, 0, v8")
    for k in range(8): e(f"v_fma_f32 v8, v{OB+k}, 0, v8")
    e("v_cmp_u_f32 vcc, v8, v8\ns_nop 4\ns_cbranch_vccz L_k2_store")
    e("s_mov_b32 s51, 2\ns_mov_b32 s52, 0\ns_mov_b32 s53, 64\nv_mov_b32 v3, v6\nv_mov_b32 v8, 0xff800000\nv_mov_b32 v9, 0xff800000")
    e("L_k2_mx:")
    e(f"ds_read_b128 {vr(KB[0],4)}, v3\nv_add_u32 v3, 1024, v3\ns_waitcnt lgkmcnt(0)")
    e(f"{MFMA} {vr(SA,16)}, {vr(KB[0],4)}, {vr(QA,4)}, 0")
    e(f"{MFMA} {vr(SB,16)}, {vr(KB[0],4)}, {vr(QB,4)}, 0")
    e("s_nop 11")
    maxtree(SA, 8, False); maxtree(SB, 9, False)
    e("s_sub_u32 s53, s53, 1\ns_cmp_lg_u32 s53, 0\ns_cbranch_scc1 L_k2_mx")
    e("s_branch L_k2_setmax")
    e("L_k2_store:")
    e("s_nop 7")
    e(f"v_rcp_f32 v8, v{OA+8}\nv_rcp_f32 v10, v{OB+8}")
    e(f"s_add_u32 s60, s50, {WS_O}")
    for k in range(8): e(f"v_mul_f32 v{OA+k}, v8, v{OA+k}")
    for k in range(8): e(f"v_mul_f32 v{OB+k}, v10, v{OB+k}")
    for k in range(4): e(f"v_cvt_pk_bf16_f32 v{SA+k}, v{OA+2*k}, v{OA+2*k+1}")
    for k in range(4): e(f"v_cvt_pk_bf16_f32 v{SA+4+k}, v{OB+2*k}, v{OB+2*k+1}")
    e(f"buffer_store_dwordx4 {vr(SA,4)}, v6, s[40:43], s60 offen")
    e(f"buffer_store_dwordx4 {vr(SA+4,4)}, v6, s[40:43], s60 offen offset:1024")
    e("s_barrier\ns_barrier")
    e("s_branch L_k2_red")
    e("L_k2_g:")
    e("s_sub_u32 s48, s3, 4")
    e(f"s_mul_i32 s61, s48, 3072\ns_add_u32 s61, s61, {LV}\ns_mov_b32 m0, s61\ns_add_u32 s61, s61, {WS_K}")
    for q in range(3): e(f"buffer_load_dwordx4 v6, s[40:43], s61 offen offset:{q*1024} lds")
    e("s_mul_i32 s62, s48, 13\ns_add_u32 s62, s62, 12\ns_lshl_b32 s62, s62, 10")
    e("s_mul_i32 s63, s48, 14\ns_min_u32 s63, s63, 40\ns_add_u32 s63, s63, 76\ns_lshl_b32 s63, s63, 10")
    for grp in range(4):
        for (sreg, n) in ((62, 13), (63, 14)):
            e(f"s_mov_b32 m0, s{sreg}\ns_add_u32 s61, s{sreg}, {WS_K}")
            for q in range(4):
                if grp*4 + q < n: e(f"buffer_load_dwordx4 v6, s[40:43], s61 offen offset:{q*1024} lds")
            if grp < 3: e(f"s_add_u32 s{sreg}, s{sreg}, 4096")
    e(f"s_mul_i32 s49, s48, 7680\ns_add_u32 s49, s49, {LG}")
    g_addr(e, 49)
    srd(e, 36, sWD, 1835008)
    e(f"s_mul_i32 s60, s4, 224\ns_mul_i32 s61, s48, 28\ns_add_u32 s60, s60, s61\ns_lshl_b32 s60, s60, 10\ns_add_u32 s60, s60, {WS_H}")
    e(f"v_add_u32 v7, s60, v6\nv_add_u32 v8, {112*1024}, v7")
    e(f"s_mul_i32 s56, s48, {28*16*1024}\ns_mov_b32 s57, 0")
    e("s_waitcnt vmcnt(27)\ns_barrier")
    GACC, WST, HST, AF = 16, 80, 144, 208
    def gloads(st):
        b = st & 1
        for k in range(4):
            for q in range(2):
                e(f"buffer_load_dwordx4 {vr(WST+b*32+k*8+q*4,4)}, v2, s[36:39], s56 offen")
                e("s_add_u32 s56, s56, 8192")
            for tt in range(2):
                e(f"buffer_load_dwordx4 {vr(HST+b*32+k*8+tt*4,4)}, v{7+tt}, s[40:43], s57 offen offset:{k*1024}")
        e("s_add_u32 s57, s57, 4096")
    gloads(0); gloads(1)
    e("s_waitcnt vmcnt(32)\ns_barrier")
    for st in range(7):
        b = st & 1
        for kp in range(2):
            rem = (16 if st < 6 else 0) + (8 if kp == 0 else 0)
            e(f"s_waitcnt vmcnt({rem})")
            for k2_ in range(2):
                for q in range(2):
                    e(f"ds_write_b128 v3, {vr(WST+b*32+(kp*2+k2_)*8+q*4,4)} offset:{k2_*2048+q*1024}")
            for k2_ in range(2):
                for mt in range(2):
                    for tp in range(2):
                        e(f"ds_read_b64_tr_b16 {vr(AF+k2_*8+mt*4+tp*2,2)}, v{4+mt} offset:{k2_*2048+tp*1024}")
            e("s_waitcnt lgkmcnt(0)")
            for k2_ in range(2):
                for tt in range(2):
                    for mt in range(2):
                        a = GACC + (tt*2+mt)*16
                        cc = "0" if (st == 0 and kp == 0 and k2_ == 0) else vr(a,16)
                        e(f"{MFMA} {vr(a,16)}, {vr(AF+k2_*8+mt*4,4)}, {vr(HST+b*32+(kp*2+k2_)*8+tt*4,4)}, {cc}")
        if st + 2 < 7: gloads(st + 2)
    e("s_barrier")
    g_write_partials(e, GACC, 48)
    e("s_waitcnt lgkmcnt(0)\ns_barrier")
    e("L_k2_red:")
    e("s_lshl_b32 s60, s3, 6\nv_add_u32 v9, s60, v0")
    reduce_partials(e, 9, 16, 24)
    e(f"s_mov_b32 s60, {f2h(-math.log2(math.e))}")
    for k in range(8): e(f"v_mul_f32 v{24+k}, s60, v{16+k}")
    for k in range(8): e(f"v_exp_f32 v{24+k}, v{24+k}")
    for k in range(8): e(f"v_add_f32 v{24+k}, 1.0, v{24+k}")
    for k in range(8): e(f"v_rcp_f32 v{24+k}, v{24+k}")
    for k in range(8): e(f"v_mul_f32 v{16+k}, v{16+k}, v{24+k}")
    e(f"s_lshl_b32 s60, s2, 14\ns_add_u32 s60, s60, {WS_G}\nv_lshlrev_b32 v9, 5, v9")
    e("buffer_store_dwordx4 v[16:19], v9, s[40:43], s60 offen\nbuffer_store_dwordx4 v[20:23], v9, s[40:43], s60 offen offset:16")
    e(f"{done}:")
    e("s_endpgm")

def k3(e, cfg):
    done = "L_k3_done"
    prologue(e, "p3_kernel", done)
    map23(e)
    e("s_lshl_b32 s60, s3, 6\nv_add_u32 v9, s60, v0      ; tid")
    e("s_waitcnt lgkmcnt(0)")
    srd(e, 40, sWS, WS_SIZE); srd(e, 32, sX, 2097152); srd(e, 44, sOUT, 2097152)
    GT, XR, OA_ = 232, 240, 244
    e(f"v_lshrrev_b32 v10, 3, v9\nv_and_b32 v11, 7, v9\nv_lshlrev_b32 v{OA_}, 10, v10\nv_lshl_add_u32 v{OA_}, v11, 4, v{OA_}")
    e("s_lshl_b32 s55, s4, 16\ns_lshl_b32 s60, s5, 7\ns_add_u32 s55, s55, s60")
    e("s_cmp_lt_u32 s3, 4\ns_cbranch_scc1 L_k3_nog")
    e("s_sub_u32 s48, s3, 4")
    e("s_lshl_b32 s49, s48, 14\ns_add_u32 s49, s49, 65536")
    g_addr(e, 49)
    srd(e, 36, sWO, 524288)
    GACC, WST, HST = 16, 80, 144
    e(f"s_lshl_b32 s56, s48, 17")
    e(f"s_lshl_b32 s60, s4, 6\ns_lshl_b32 s61, s48, 3\ns_add_u32 s60, s60, s61\ns_lshl_b32 s60, s60, 10\ns_add_u32 s60, s60, {WS_O}")
    e("v_add_u32 v7, s60, v6\nv_add_u32 v8, 32768, v7\ns_mov_b32 s57, 0\ns_mov_b32 s58, 4096")
    for k in range(8):
        for q in range(2):
            e(f"buffer_load_dwordx4 {vr(WST+k*8+q*4,4)}, v2, s[36:39], s56 offen")
            e("s_add_u32 s56, s56, 8192")
    for k in range(8):
        for tt in range(2):
            e(f"buffer_load_dwordx4 {vr(HST+k*8+tt*4,4)}, v{7+tt}, s[40:43], s{57+(k>>2)} offen offset:{(k&3)*1024}")
    e("L_k3_nog:")
    e(f"s_lshl_b32 s60, s2, 14\ns_add_u32 s60, s60, {WS_G}\nv_lshlrev_b32 v10, 5, v9")
    e(f"buffer_load_dwordx4 {vr(GT,4)}, v10, s[40:43], s60 offen\nbuffer_load_dwordx4 {vr(GT+4,4)}, v10, s[40:43], s60 offen offset:16")
    e(f"buffer_load_dwordx4 {vr(XR,4)}, v{OA_}, s[32:35], s55 offen")
    e("s_cmp_lt_u32 s3, 4\ns_cbranch_scc1 L_k3_wait")
    for k in range(8):
        e(f"s_waitcnt vmcnt({19 + 14 - 2*k})")
        for q in range(2):
            e(f"ds_write_b128 v3, {vr(WST+k*8+q*4,4)} offset:{k*2048+q*1024}")
    for k in range(8):
        for mt in range(2):
            for tp in range(2):
                e(f"ds_read_b64_tr_b16 {vr(WST+k*8+mt*4+tp*2,2)}, v{4+mt} offset:{k*2048+tp*1024}")
    e("s_waitcnt lgkmcnt(0)")
    for k in range(8):
        e(f"s_waitcnt vmcnt({3 + 14 - 2*k})")
        for tt in range(2):
            for mt in range(2):
                a = GACC + (tt*2+mt)*16
                cc = "0" if k == 0 else vr(a,16)
                e(f"{MFMA} {vr(a,16)}, {vr(WST+k*8+mt*4,4)}, {vr(HST+k*8+tt*4,4)}, {cc}")
    g_write_partials(e, GACC, 48)
    e("s_waitcnt lgkmcnt(0)")
    e("L_k3_wait:")
    e("s_barrier")
    reduce_partials(e, 9, 16, 24)
    e("s_waitcnt vmcnt(0)\ns_mov_b32 s59, 0xffff0000")
    for k in range(4):
        e(f"v_lshlrev_b32 v{24+2*k}, 16, v{XR+k}\nv_and_b32 v{25+2*k}, s59, v{XR+k}")
    for k in range(8): e(f"v_fmac_f32 v{24+k}, v{16+k}, v{GT+k}")
    for k in range(4): e(f"v_cvt_pk_bf16_f32 v{16+k}, v{24+2*k}, v{25+2*k}")
    e(f"buffer_store_dwordx4 v[16:19], v{OA_}, s[44:47], s55 offen")
    e(f"{done}:")
    e("s_endpgm")

def build(cfg):
    e = Asm()
    hdr = open("cdna_kernels/" + NAME + ".s.ref").read().split("; Override launch")[0]
    out = hdr
    out += "; @launch kernel=p1_kernel grid=(256,1,1) block=(512,1,1) lds=163840\n"
    out += "; @launch kernel=p2_kernel grid=(256,1,1) block=(512,1,1) lds=163840\n"
    out += "; @launch kernel=p3_kernel grid=(256,1,1) block=(512,1,1) lds=131072\n"
    out += '.amdgcn_target "amdgcn-amd-amdhsa--gfx950"\n.text\n'
    k1(e, cfg); k2(e, cfg); k3(e, cfg)
    out += e.text()
    out += '.section .rodata,"a"\n' + kd("p1_kernel", 256) + kd("p2_kernel", 256) + kd("p3_kernel", 256)
    return out

if __name__ == "__main__":
    cfg = {}
    dst = sys.argv[1] if len(sys.argv) > 1 else "cdna_kernels/" + NAME + ".s"
    for a in sys.argv[2:]:
        k, v = a.split("="); cfg[k] = int(v) if v.isdigit() else v
    open(dst, "w").write(build(cfg))
    print("wrote", dst)
```

```python
import sys, math
from asmlib import *

NAME = "recurrent_scan__grouped_kv_mqa__glu_gated_geglu__prompt"
WS_Q, WS_O, WS_K, WS_V, WS_H, WS_G = 0, 0x200000, 0x400000, 0x410000, 0x500000, 0xC00000
WS_SIZE = 0x10000000
VT = 1056
QSCALE = 0.25 * math.log2(math.e)
OFF = 80.0
sX, sWQ, sWK, sWV, sWO, sWG, sWU, sWD, sOUT, sDBG, sWS = 8, 10, 12, 14, 16, 20, 22, 24, 26, 28, 30

def prologue(e, name, done):
    e(f".globl {name}\n.p2align 8\n.type {name},@function\n{name}:")
    e("s_cmp_ge_u32 s2, 256")
    e(f"s_cbranch_scc1 {done}")
    e("s_load_dwordx8 s[8:15], s[0:1], 0")
    e("s_load_dwordx16 s[16:31], s[0:1], 32")
    e("v_lshrrev_b32 v1, 6, v0")
    e("v_and_b32 v0, 63, v0")
    e("v_readfirstlane_b32 s3, v1")
    if STAMP:
        for k in range(1, 9): e(f"s_mov_b32 s{72+2*k}, 0")
        e("s_mov_b32 s71, s3")
        stamp(e, 0)

STAMP = False
WS_T = 0xF000000
def stamp(e, idx):
    if STAMP:
        e(f"s_memrealtime s[{72+2*idx}:{73+2*idx}]")
def endpgm(e, kidx, nst=8):
    if STAMP:
        e("s_memrealtime s[86:87]")
        e("s_waitcnt vmcnt(0) lgkmcnt(0)")
        e("s_memrealtime s[88:89]")
        srd(e, 40, sWS, WS_SIZE)
        e(f"s_lshl_b32 s60, s2, 9\ns_lshl_b32 s61, s71, 6\ns_add_u32 s60, s60, s61\ns_add_u32 s60, s60, {WS_T + kidx*256*512}")
        e("s_waitcnt lgkmcnt(0)")
        e("v_mov_b32 v1, 0")
        for k in range(9):
            e(f"v_mov_b32 v2, s{72+2*k}\nbuffer_store_dword v2, v1, s[40:43], s60 offen offset:{4*k}\ns_nop 1")
    e("s_endpgm")

MFMA = "v_mfma_f32_32x32x16_bf16"
SMF = "v_smfmac_f32_32x32x32_bf16"

def k1(e, cfg):
    XN, WR, WKV = 0, 32768, 131072
    NSLOT = 6
    done = "L_k1_done"
    prologue(e, "p1_kernel", done)
    e("s_and_b32 s6, s2, 7\ns_lshr_b32 s7, s2, 3")
    if cfg.get("map", "8x4") == "8x4":
        e("s_and_b32 s4, s6, 1\ns_lshl_b32 s4, s4, 3\ns_and_b32 s60, s7, 7\ns_add_u32 s4, s4, s60")
        e("s_lshr_b32 s5, s6, 1\ns_lshl_b32 s5, s5, 2\ns_lshr_b32 s60, s7, 3\ns_add_u32 s5, s5, s60")
    else:
        e("s_and_b32 s4, s6, 3\ns_lshl_b32 s4, s4, 2\ns_and_b32 s60, s7, 3\ns_add_u32 s4, s4, s60")
        e("s_lshr_b32 s5, s6, 2\ns_lshl_b32 s5, s5, 3\ns_lshr_b32 s60, s7, 2\ns_add_u32 s5, s5, s60")
    e("s_cmp_ge_u32 s3, 4")
    e("s_cbranch_scc1 L_k1_compute")
    X = 64
    def xr(rg, c): return X + rg * 32 + c * 4
    e("v_lshrrev_b32 v1, 3, v0    ; rho")
    e("v_and_b32 v2, 7, v0        ; chunk")
    e("s_lshl_b32 s60, s4, 7\ns_lshl_b32 s61, s3, 5\ns_add_u32 s60, s60, s61")
    e("v_add_u32 v3, s60, v1\nv_lshlrev_b32 v3, 10, v3\nv_lshl_add_u32 v3, v2, 4, v3")
    e("s_mov_b32 s52, 0\ns_mov_b32 s53, 8192\ns_mov_b32 s54, 16384\ns_mov_b32 s55, 24576")
    e("s_waitcnt lgkmcnt(0)")
    srd(e, 32, sX, 2097152)
    for rg in range(4):
        for c in range(8):
            e(f"buffer_load_dwordx4 {vr(xr(rg,c),4)}, v3, s[32:35], s{52+rg} offen offset:{c*128}")
    e("s_lshr_b32 s62, s3, 1      ; mat\ns_and_b32 s63, s3, 1       ; line")
    e("s_cmp_ge_u32 s5, 14")
    e("s_cbranch_scc1 L_k1_hq")
    e("s_cmp_eq_u32 s62, 0")
    e(f"s_cselect_b32 s36, s{sWG}, s{sWU}\ns_cselect_b32 s37, s{sWG+1}, s{sWU+1}")
    e("s_mov_b32 s38, 1835008\ns_mov_b32 s64, 3584\ns_lshl_b32 s65, s5, 8")
    e("s_branch L_k1_hw")
    e("L_k1_hq:")
    e(f"s_mov_b32 s36, s{sWQ}\ns_mov_b32 s37, s{sWQ+1}\ns_mov_b32 s38, 524288\ns_mov_b32 s64, 1024")
    e("s_sub_u32 s65, s5, 14\ns_lshl_b32 s65, s65, 9\ns_lshl_b32 s60, s62, 8\ns_add_u32 s65, s65, s60")
    e("L_k1_hw:")
    e("s_mov_b32 s39, 0x00020000")
    e("s_lshl_b32 s60, s63, 7\ns_add_u32 s65, s65, s60")
    e("s_lshl_b32 s60, s62, 2")
    e("v_and_b32 v4, 2, v1\nv_or_b32 v4, s60, v4\nv_xor_b32 v4, v4, v2\nv_lshlrev_b32 v4, 4, v4")
    e("v_mul_lo_u32 v7, v1, s64\nv_add3_u32 v4, v4, v7, s65")
    e("s_lshl_b32 s57, s64, 3\ns_sub_u32 s56, 0, s57")
    e(f"s_lshl_b32 s58, s3, 12\ns_add_u32 s58, s58, {WR}")
    def wdma(stage):
        slot = stage % NSLOT
        for q in range(4):
            e(f"s_add_u32 m0, s58, {slot*16384 + q*1024}")
            e("s_add_u32 s56, s56, s57")
            e("buffer_load_dwordx4 v4, s[36:39], s56 offen lds")
    for st in range(NSLOT - 1):
        wdma(st)
    nW = 4 * (NSLOT - 1)
    e("s_lshl_b32 s60, s3, 12")
    e("v_lshrrev_b32 v5, 1, v1\nv_xor_b32 v5, v5, v2\nv_lshlrev_b32 v5, 4, v5\nv_lshl_add_u32 v5, v1, 7, v5\nv_add_u32 v5, s60, v5")
    e("v_xor_b32 v6, 64, v5")
    e("s_mov_b32 s59, 0xffff0000\ns_mov_b32 s66, 0x3f803f80")
    e("v_and_b32 v24, 31, v0\nv_lshrrev_b32 v25, 5, v0\nv_bfe_u32 v26, v0, 1, 3\nv_xor_b32 v26, v26, v25\nv_lshlrev_b32 v26, 4, v26")
    e("v_lshl_add_u32 v26, v24, 7, v26\nv_add_u32 v28, s60, v26\nv_xor_b32 v29, 32, v28\nv_xor_b32 v30, 64, v28\nv_xor_b32 v31, 96, v28")
    e("v_bfe_u32 v26, v0, 4, 1\nv_lshlrev_b32 v26, 14, v26\nv_lshl_add_u32 v26, v25, 8, v26\nv_and_b32 v27, 15, v0\nv_lshl_add_u32 v27, v27, 3, v26")
    e(f"v_add_u32 v27, {WKV}, v27")
    for rg in range(4):
        e(f"v_mov_b32 v{8+rg}, 0\nv_mov_b32 v{12+rg}, 0")
    for rg in range(4):
        for c in range(8):
            if c % 2 == 0:
                e(f"s_waitcnt vmcnt({nW + 32 - (rg*8 + c + 2)})")
            for r in range(4):
                e(f"v_dot2c_f32_bf16 v{8+rg}, s66, v{xr(rg,c)+r}")
                e(f"v_dot2c_f32_bf16 v{12+rg}, v{xr(rg,c)+r}, v{xr(rg,c)+r}")
    stamp(e, 1)
    e("s_nop 2")
    for dpp in ("quad_perm:[1,0,3,2]", "quad_perm:[2,3,0,1]", "row_half_mirror"):
        for k in range(8):
            e(f"v_add_f32_dpp v{8+k}, v{8+k}, v{8+k} {dpp} row_mask:0xf bank_mask:0xf")
    e(f"s_mov_b32 s60, {f2h(1/512)}\ns_mov_b32 s61, {f2h(1e-5)}")
    for rg in range(4): e(f"v_mul_f32 v{8+rg}, s60, v{8+rg}")
    for rg in range(4): e(f"v_mul_f32 v{16+rg}, v{8+rg}, v{8+rg}")
    for rg in range(4): e(f"v_fma_f32 v{16+rg}, v{12+rg}, s60, -v{16+rg}")
    for rg in range(4): e(f"v_max_f32 v{16+rg}, 0, v{16+rg}")
    for rg in range(4): e(f"v_add_f32 v{16+rg}, s61, v{16+rg}")
    for rg in range(4): e(f"v_rsq_f32 v{16+rg}, v{16+rg}")
    e("s_nop 0")
    for rg in range(4): e(f"v_mul_f32 v{20+rg}, v{8+rg}, v{16+rg}")
    def norm(rg, c):
        b = xr(rg, c)
        for r in range(4):
            e(f"v_lshlrev_b32 v{32+2*r}, 16, v{b+r}\nv_and_b32 v{33+2*r}, s59, v{b+r}")
        for r in range(8):
            e(f"v_fma_f32 v{32+r}, v{32+r}, v{16+rg}, -v{20+rg}")
        for r in range(4):
            e(f"v_cvt_pk_bf16_f32 v{b+r}, v{32+2*r}, v{33+2*r}")
        e(f"ds_write_b128 v{5+(rg&1)}, {vr(b,4)} offset:{XN + (c&1)*16384 + rg*1024}")
    for rg in range(4): norm(rg, 0)
    KVACC, KVB, KVA = 192, 208, 216
    for t in range(16):
        issued = min(16, t + NSLOT - 1)
        e(f"s_waitcnt vmcnt({4*(issued - t - 1)}) lgkmcnt(0)")
        e("s_barrier")
        skip = e.new("nokv")
        e(f"s_cmp_lg_u32 s5, 14\ns_cbranch_scc1 {skip}")
        for s2 in range(2):
            s = 2*t + s2
            e(f"ds_read_b128 {vr(KVB+4*s2,4)}, v{28+(s&3)} offset:{XN + ((s>>2)&1)*16384}")
            for tp in range(2):
                e(f"ds_read_b64_tr_b16 {vr(KVA+4*s2+2*tp,2)}, v27 offset:{s*512 + tp*128}")
        e(f"{skip}:")
        if t + NSLOT - 1 < 16: wdma(t + NSLOT - 1)
        c = (t >> 1) + 1
        if c < 8:
            for rg in (2*(t&1), 2*(t&1)+1): norm(rg, c)
        skip = e.new("nokv")
        e(f"s_cmp_lg_u32 s5, 14\ns_cbranch_scc1 {skip}")
        e("s_waitcnt lgkmcnt(0)")
        for s2 in range(2):
            cc = "0" if (t == 0 and s2 == 0) else vr(KVACC,16)
            e(f"{MFMA} {vr(KVACC,16)}, {vr(KVA+4*s2,4)}, {vr(KVB+4*s2,4)}, {cc}")
        e(f"{skip}:")
    e(f"s_cmp_lg_u32 s5, 14\ns_cbranch_scc1 L_k1_end")
    srd(e, 40, sWS, WS_SIZE)
    e("s_lshl_b32 s60, s4, 2\ns_add_u32 s60, s60, s3")
    e(f"s_lshl_b32 s61, s60, 10\ns_add_u32 s61, s61, {WS_K}")
    e(f"s_mul_i32 s62, s60, {VT}\ns_add_u32 s62, s62, {WS_V}")
    e("v_lshlrev_b32 v32, 4, v0")
    e("s_lshl_b32 s63, s3, 10")
    e("v_bfe_u32 v33, v0, 3, 2\nv_lshlrev_b32 v33, 8, v33\nv_lshl_add_u32 v33, v25, 6, v33\nv_and_b32 v34, 7, v0\nv_lshl_add_u32 v33, v34, 1, v33\nv_add_u32 v33, s63, v33")
    e("v_add_u32 v35, s63, v32")
    e("v_mul_u32_u24 v36, 528, v25\nv_lshl_add_u32 v37, v24, 4, v36")
    e("v_mov_b32 v40, s66\nv_mov_b32 v41, s66\nv_mov_b32 v42, s66\nv_mov_b32 v43, s66")
    e("s_nop 4")
    for r in range(8):
        e(f"v_cvt_pk_bf16_f32 v{44+r}, v{KVACC+2*r}, v{KVACC+2*r+1}")
    e("buffer_store_dwordx4 v[44:47], v32, s[40:43], s61 offen")
    for r in range(4):
        d0 = (2*r & 3) + 8*((2*r) >> 2)
        e(f"ds_write_b16 v33, v{48+r} offset:{XN + d0*16}")
        e(f"ds_write_b16_d16_hi v33, v{48+r} offset:{XN + (d0+1)*16}")
    e(f"ds_read_b128 v[52:55], v35 offset:{XN}")
    e("buffer_store_dwordx4 v[40:43], v36, s[40:43], s62 offen offset:512")
    e("s_waitcnt lgkmcnt(0)")
    e("buffer_store_dwordx4 v[52:55], v37, s[40:43], s62 offen")
    e("s_branch L_k1_end")
    e("L_k1_compute:")
    e("s_setprio 1")
    e("s_sub_u32 s3, s3, 4")
    ACC, FB = 64, 192
    def acc(tt, gi): return ACC + (tt*2 + gi)*16
    def fb(b, tt): return FB + b*24 + tt*4
    def fa(b, gi): return FB + b*24 + 16 + gi*4
    e("v_and_b32 v10, 31, v0\nv_lshrrev_b32 v11, 5, v0\nv_bfe_u32 v12, v0, 1, 3\nv_xor_b32 v12, v12, v11\nv_lshlrev_b32 v12, 4, v12")
    e("v_lshl_add_u32 v2, v10, 7, v12\nv_xor_b32 v3, 32, v2\nv_xor_b32 v4, 64, v2\nv_xor_b32 v5, 96, v2")
    e("v_bfe_u32 v12, v0, 4, 1      ; mat\nv_bfe_u32 v13, v0, 2, 2      ; r\nv_and_b32 v14, 3, v0   ; c")
    e("s_and_b32 s60, s3, 1\ns_lshl_b32 s60, s60, 1   ; g&3 base\ns_lshr_b32 s61, s3, 1\ns_lshl_b32 s61, s61, 12")
    e(f"s_add_u32 s61, s61, {WR}")
    e("v_lshrrev_b32 v15, 1, v13\nv_lshl_or_b32 v15, v12, 1, v15\nv_xor_b32 v15, s60, v15\nv_lshlrev_b32 v15, 5, v15")
    e("v_lshl_add_u32 v15, v14, 3, v15\nv_lshl_add_u32 v15, v13, 7, v15\nv_lshl_add_u32 v15, v11, 10, v15\nv_lshl_add_u32 v15, v12, 13, v15")
    e("v_add_u32 v6, s61, v15\nv_xor_b32 v7, 32, v6\nv_add_u32 v8, 49152, v6\nv_add_u32 v9, 49152, v7")
    e("s_waitcnt lgkmcnt(0)")
    e("s_cmp_lg_u32 s5, 14\ns_cbranch_scc1 L_k1_nokvdma")
    e("s_cmp_lt_u32 s3, 2")
    e(f"s_cselect_b32 s44, s{sWK}, s{sWV}\ns_cselect_b32 s45, s{sWK+1}, s{sWV+1}\ns_mov_b32 s46, 16384\ns_mov_b32 s47, 0x00020000")
    e("v_lshlrev_b32 v16, 4, v0")
    e("s_and_b32 s60, s3, 1\ns_lshl_b32 s60, s60, 13")
    e(f"s_lshl_b32 s61, s3, 13\ns_add_u32 s61, s61, {WKV}")
    for half in range(2):
        e("s_mov_b32 m0, s61\ns_nop 0")
        for q in range(4):
            e(f"buffer_load_dwordx4 v16, s[44:47], s60 offen offset:{q*1024} lds")
        if half == 0:
            e("s_add_u32 s60, s60, 4096\ns_add_u32 s61, s61, 4096")
    e("s_waitcnt vmcnt(0)")
    e("L_k1_nokvdma:")
    def reads(s):
        b = s & 1
        st = s >> 1; slot = st % NSLOT
        out = []
        for gi in range(2):
            for tp in range(2):
                out.append(f"ds_read_b64_tr_b16 {vr(fa(b,gi)+2*tp,2)}, v{6+gi+2*(slot//3)} offset:{(slot%3)*16384 + (s&1)*2048 + tp*512}")
        xr_ = [f"ds_read_b128 {vr(fb(b,tt),4)}, v{2+(s&3)} offset:{XN + ((s>>2)&1)*16384 + tt*4096}" for tt in range(4)]
        return [out[0], out[1], xr_[0], out[2], out[3], xr_[1], xr_[2], xr_[3]]
    stamp(e, 1)
    e("s_barrier")
    stamp(e, 2)
    for r in reads(0): e(r)
    e("s_waitcnt lgkmcnt(0)")
    for s in range(32):
        b = s & 1
        rd = reads(s+1) if s + 1 < 32 else []
        mi = 0
        for tt in range(4):
            for gi in range(2):
                cc = "0" if s == 0 else vr(acc(tt,gi),16)
                e(f"{MFMA} {vr(acc(tt,gi),16)}, {vr(fa(b,gi),4)}, {vr(fb(b,tt),4)}, {cc}")
                if mi == 0 and rd and (s+1) % 2 == 0:
                    e("s_barrier")
                if rd and mi < 4:
                    e(rd[2*mi]); e(rd[2*mi+1])
                mi += 1
        if rd: e("s_waitcnt lgkmcnt(0)")
    stamp(e, 3)
    srd(e, 40, sWS, WS_SIZE)
    e("v_lshlrev_b32 v2, 4, v0")
    e("s_cmp_ge_u32 s5, 14\ns_cbranch_scc1 L_k1_epq")
    GA = -2*math.sqrt(2/math.pi)*math.log2(math.e); GB = GA*0.044715
    e(f"v_mov_b32 v4, {f2h(GA)}\nv_mov_b32 v5, {f2h(GA)}\nv_mov_b32 v6, {f2h(GB)}\nv_mov_b32 v7, {f2h(GB)}\nv_mov_b32 v8, 1.0\nv_mov_b32 v9, 1.0")
    e(f"s_mul_i32 s60, s4, 448\ns_lshl_b32 s61, s5, 3\ns_add_u32 s60, s60, s61\ns_lshl_b32 s61, s3, 1\ns_add_u32 s60, s60, s61\ns_lshl_b32 s60, s60, 10\ns_add_u32 s60, s60, {WS_H}")
    T = 16
    for tt in range(4):
        for gi in range(2):
            a = acc(tt, gi); o = 32 + ((tt*2+gi) & 1)*4
            P = lambda x: vr(x, 2)
            for k in range(4): e(f"v_pk_mul_f32 {P(T+2*k)}, {P(a+2*k)}, {P(a+2*k)}")
            for k in range(4): e(f"v_pk_fma_f32 {P(T+2*k)}, {P(T+2*k)}, v[6:7], v[4:5]")
            for k in range(4): e(f"v_pk_mul_f32 {P(T+2*k)}, {P(T+2*k)}, {P(a+2*k)}")
            for k in range(4):
                e(f"v_exp_f32 v{T+2*k}, v{T+2*k}\nv_exp_f32 v{T+2*k+1}, v{T+2*k+1}")
                e(f"v_pk_mul_f32 {P(a+2*k)}, {P(a+2*k)}, {P(a+8+2*k)}")
            for k in range(4): e(f"v_pk_add_f32 {P(T+2*k)}, {P(T+2*k)}, v[8:9]")
            for k in range(8): e(f"v_rcp_f32 v{T+k}, v{T+k}")
            for k in range(4): e(f"v_pk_mul_f32 {P(a+2*k)}, {P(a+2*k)}, {P(T+2*k)}")
            for k in range(4): e(f"v_cvt_pk_bf16_f32 v{o+k}, v{a+2*k}, v{a+2*k+1}")
            e(f"buffer_store_dwordx4 {vr(o,4)}, v2, s[40:43], s60 offen offset:{gi*1024}")
        if tt < 3: e(f"s_add_u32 s60, s60, {112*1024}")
    e("s_branch L_k1_end")
    e("L_k1_epq:")
    e(f"v_mov_b32 v4, {f2h(QSCALE)}\nv_mov_b32 v5, {f2h(QSCALE)}")
    e(f"s_lshl_b32 s60, s4, 7\ns_sub_u32 s61, s5, 14\ns_lshl_b32 s61, s61, 4\ns_add_u32 s60, s60, s61\ns_lshl_b32 s61, s3, 1\ns_add_u32 s60, s60, s61\ns_lshl_b32 s60, s60, 10\ns_add_u32 s60, s60, {WS_Q}")
    e("s_add_u32 s61, s60, 8192")
    for tt in range(4):
        for gi in range(2):
            a = acc(tt, gi); o = 32 + ((tt*2+gi) & 1)*8
            for k in range(8): e(f"v_pk_mul_f32 {vr(a+2*k,2)}, {vr(a+2*k,2)}, v[4:5]")
            for k in range(8): e(f"v_cvt_pk_bf16_f32 v{o+k}, v{a+2*k}, v{a+2*k+1}")
            e(f"buffer_store_dwordx4 {vr(o,4)}, v2, s[40:43], s60 offen offset:{gi*1024}")
            e(f"buffer_store_dwordx4 {vr(o+4,4)}, v2, s[40:43], s61 offen offset:{gi*1024}")
        if tt < 3: e("s_add_u32 s60, s60, 32768\ns_add_u32 s61, s61, 32768")
    e("L_k1_end:"); endpgm(e, 0); e(f"{done}:")
    e("s_endpgm")

LK, LV, LG = 0, 65536, 133120
def map23(e):
    e("s_and_b32 s6, s2, 7\ns_lshr_b32 s7, s2, 3")
    e("s_lshl_b32 s4, s6, 2\ns_lshr_b32 s60, s7, 3\ns_add_u32 s4, s4, s60\ns_and_b32 s5, s7, 7")

def g_addr(e, lbase_sgpr):
    e("v_lshrrev_b32 v10, 3, v0\nv_and_b32 v11, 7, v0")
    e("s_lshl_b32 s60, s5, 7")
    e("v_lshlrev_b32 v2, 10, v10\nv_lshl_add_u32 v2, v11, 4, v2\nv_add_u32 v2, s60, v2")
    e("v_and_b32 v12, 2, v10\nv_lshlrev_b32 v12, 1, v12\nv_xor_b32 v12, v12, v11\nv_lshlrev_b32 v12, 4, v12\nv_lshl_add_u32 v3, v10, 7, v12")
    e(f"v_add_u32 v3, s{lbase_sgpr}, v3")
    e("v_bfe_u32 v12, v0, 2, 2\nv_lshrrev_b32 v13, 5, v0\nv_lshl_add_u32 v13, v13, 2, v12\nv_lshlrev_b32 v4, 7, v13")
    e("v_lshrrev_b32 v12, 1, v12\nv_lshl_add_u32 v4, v12, 6, v4\nv_bfe_u32 v12, v0, 4, 1\nv_lshl_add_u32 v4, v12, 5, v4\nv_and_b32 v12, 3, v0\nv_lshl_add_u32 v4, v12, 3, v4")
    e(f"v_add_u32 v4, s{lbase_sgpr}, v4\nv_xor_b32 v5, 64, v4")
    e("v_lshlrev_b32 v6, 4, v0")

def g_write_partials(e, ACC, wsg):
    e("v_and_b32 v10, 31, v0\nv_lshrrev_b32 v11, 5, v0\nv_and_b32 v12, 7, v0\nv_xor_b32 v12, v12, v11\nv_lshlrev_b32 v12, 4, v12")
    e(f"s_lshl_b32 s60, s{wsg}, 14")
    e("v_lshl_add_u32 v12, v10, 8, v12\nv_add_u32 v12, s60, v12\nv_xor_b32 v13, 32, v12\nv_xor_b32 v14, 64, v12\nv_xor_b32 v15, 96, v12")
    for tt in range(2):
        for mt in range(2):
            for q in range(4):
                e(f"ds_write_b128 v{12+q}, {vr(ACC+(tt*2+mt)*16+4*q,4)} offset:{tt*8192 + mt*128}")

def reduce_partials(e, tidreg, dst, tmp, base=0):
    e(f"v_lshrrev_b32 v10, 3, v{tidreg}\nv_and_b32 v11, 7, v{tidreg}\nv_lshlrev_b32 v11, 1, v11\nv_and_b32 v12, 7, v10\nv_xor_b32 v11, v11, v12")
    e("v_lshlrev_b32 v11, 4, v11\nv_lshl_add_u32 v10, v10, 8, v11\nv_xor_b32 v11, 16, v10")
    for w in range(4):
        d = dst if w == 0 else tmp + (w-1)*8
        e(f"ds_read_b128 {vr(d,4)}, v10 offset:{base + w*16384}")
        e(f"ds_read_b128 {vr(d+4,4)}, v11 offset:{base + w*16384}")
    e("s_waitcnt lgkmcnt(4)")
    for k in range(4): e(f"v_pk_add_f32 {vr(dst+2*k,2)}, {vr(dst+2*k,2)}, {vr(tmp+2*k,2)}")
    e("s_waitcnt lgkmcnt(0)")
    for k in range(4): e(f"v_pk_add_f32 {vr(tmp+8+2*k,2)}, {vr(tmp+8+2*k,2)}, {vr(tmp+16+2*k,2)}")
    for k in range(4): e(f"v_pk_add_f32 {vr(dst+2*k,2)}, {vr(dst+2*k,2)}, {vr(tmp+8+2*k,2)}")

def k2(e, cfg):
    done = "L_k2_done"
    U = cfg.get("U", 4)
    prologue(e, "p2_kernel", done)
    map23(e)
    e("v_lshlrev_b32 v6, 4, v0")
    e("s_waitcnt lgkmcnt(0)")
    srd(e, 40, sWS, WS_SIZE)
    e("s_cmp_ge_u32 s3, 4\ns_cbranch_scc1 L_k2_g")
    SA, SB, CA, CB, OA, OB, QA, QB = 16, 32, 48, 64, 80, 96, 112, 116
    KB = [120, 124]; V1 = [128, 132]; V2 = [136, 140]
    e("s_setprio 1")
    e("s_lshl_b32 s60, s4, 1\ns_and_b32 s61, s3, 1\ns_add_u32 s60, s60, s61\ns_lshl_b32 s60, s60, 5\ns_lshl_b32 s61, s5, 2\ns_add_u32 s60, s60, s61\ns_and_b32 s61, s3, 2\ns_add_u32 s60, s60, s61\ns_lshl_b32 s50, s60, 10")
    if WS_Q: e(f"s_add_u32 s60, s50, {WS_Q}")
    else: e("s_mov_b32 s60, s50")
    e(f"buffer_load_dwordx4 {vr(QA,4)}, v6, s[40:43], s60 offen")
    e(f"buffer_load_dwordx4 {vr(QB,4)}, v6, s[40:43], s60 offen offset:1024")
    e(f"s_mul_i32 s61, s3, 3072\ns_mov_b32 m0, s61\ns_add_u32 s61, s61, {WS_K}")
    for q in range(3): e(f"buffer_load_dwordx4 v6, s[40:43], s61 offen offset:{q*1024} lds")
    e("v_and_b32 v10, 31, v0\nv_lshrrev_b32 v11, 5, v0\nv_lshlrev_b32 v11, 8, v11\nv_lshl_add_u32 v11, v10, 4, v11")
    e("v_cmp_gt_u32 vcc, 16, v10\nv_mov_b32 v12, 512\nv_mov_b32 v2, 0xdddddddd")
    e(f"v_cndmask_b32 v5, v12, v11, vcc\nv_add_u32 v5, {LV}, v5")
    e("s_mov_b32 s51, 0")
    e("s_waitcnt vmcnt(0)")
    stamp(e, 1)
    e("s_barrier")
    stamp(e, 2)
    e(f"ds_read_b128 {vr(KB[0],4)}, v6")
    e("s_waitcnt lgkmcnt(0)")
    e(f"{MFMA} {vr(SA,16)}, {vr(KB[0],4)}, {vr(QA,4)}, 0")
    e(f"{MFMA} {vr(SB,16)}, {vr(KB[0],4)}, {vr(QB,4)}, 0")
    e("s_nop 10")
    def maxtree(S, d, first):
        if first:
            e(f"v_max3_f32 v{d}, v{S}, v{S+1}, v{S+2}")
            for k in range(3, 15, 2): e(f"v_max3_f32 v{d}, v{d}, v{S+k}, v{S+k+1}")
            e(f"v_max_f32 v{d}, v{d}, v{S+15}")
        else:
            for k in range(0, 16, 2): e(f"v_max3_f32 v{d}, v{d}, v{S+k}, v{S+k+1}")
    maxtree(SA, 8, True); maxtree(SB, 9, True)
    e(f"s_mov_b32 s52, {f2h(-OFF)}")
    e("L_k2_setmax:")
    e("v_mov_b32 v10, v8\nv_mov_b32 v11, v9\ns_nop 1\nv_permlane32_swap_b32 v8, v10\nv_permlane32_swap_b32 v9, v11\ns_nop 1")
    e("v_max_f32 v8, v8, v10\nv_max_f32 v9, v9, v11\nv_sub_f32 v8, s52, v8\nv_sub_f32 v9, s52, v9")
    e("v_mov_b32 v3, v6\nv_mov_b32 v4, v5")
    e(f"ds_read_b128 {vr(KB[0],4)}, v3")
    e(f"ds_read_b128 {vr(KB[1],4)}, v3 offset:1024")
    e(f"ds_read_b128 {vr(V1[0],4)}, v4")
    e(f"ds_read_b128 {vr(V2[0],4)}, v4 offset:528")
    e(f"ds_read_b128 {vr(V1[1],4)}, v4 offset:{VT}")
    for k in range(16): e(f"v_mov_b32 v{CA+k}, v8")
    for k in range(16): e(f"v_mov_b32 v{CB+k}, v9")
    for k in range(16): e(f"v_mov_b32 v{OA+k}, 0\nv_mov_b32 v{OB+k}, 0")
    for k in range(8): e(f"v_mov_b32 v{SB+8+k}, 0")
    for k in range(4): e(f"v_mov_b32 v{V2[1]+k}, 0")
    e("s_waitcnt lgkmcnt(0)")
    e(f"{MFMA} {vr(SA,16)}, {vr(KB[0],4)}, {vr(QA,4)}, {vr(CA,16)}")
    n1 = 8 // U
    e(f"s_cmp_eq_u32 s51, 0\ns_cselect_b32 s53, {n1}, {64//U}")
    stamp(e, 3)
    e("s_nop 9")
    e(".p2align 6")
    e("L_k2_loop:")
    def ex(S, ks):
        for k in ks: e(f"v_exp_f32 v{S+k}, v{S+k}")
    for u in range(U):
        b = u & 1
        ex(SA, [0, 1])
        e(f"{SMF} {vr(OB,16)}, {vr(V2[b^1],4)}, {vr(SB+8,8)}, v2")
        e(f"ds_read_b128 {vr(V2[b^1],4)}, v4 offset:{(u+1)*VT + 528}")
        ex(SA, [2, 3, 4])
        e(f"{MFMA} {vr(SB,16)}, {vr(KB[b],4)}, {vr(QB,4)}, {vr(CB,16)}")
        e(f"ds_read_b128 {vr(KB[b],4)}, v3 offset:{(u+2)*1024}")
        ex(SA, [5, 6, 7, 8, 9])
        e(f"{SMF} {vr(OA,16)}, {vr(V1[b],4)}, {vr(SA,8)}, v2")
        e("s_waitcnt lgkmcnt(2)")
        if u == U-1: e("s_sub_u32 s53, s53, 1")
        ex(SA, range(10, 16))
        ex(SB, [0, 1])
        e(f"{SMF} {vr(OA,16)}, {vr(V2[b],4)}, {vr(SA+8,8)}, v2")
        if u == U-1: e("s_cmp_lg_u32 s53, 0")
        ex(SB, [2, 3, 4])
        e(f"{MFMA} {vr(SA,16)}, {vr(KB[b^1],4)}, {vr(QA,4)}, {vr(CA,16)}")
        ex(SB, [5, 6, 7, 8, 9])
        e(f"{SMF} {vr(OB,16)}, {vr(V1[b],4)}, {vr(SB,8)}, v2")
        e(f"ds_read_b128 {vr(V1[b],4)}, v4 offset:{(u+2)*VT}")
        if u == U-1:
            e(f"v_add_u32 v3, {U*1024}, v3\nv_add_u32 v4, {U*VT}, v4")
        ex(SB, range(10, 16))
    e("s_cbranch_scc1 L_k2_loop")
    e("s_cmp_lg_u32 s51, 0\ns_cbranch_scc1 L_k2_fin")
    e(f"s_mov_b32 s51, 1\ns_mov_b32 s53, {64//U - n1}\ns_barrier\ns_branch L_k2_loop")
    e("L_k2_fin:")
    stamp(e, 4)
    e(f"{SMF} {vr(OB,16)}, {vr(V2[1],4)}, {vr(SB+8,8)}, v2")
    e(f"s_mov_b32 s54, {f2h(2.0**20)}")
    e("s_waitcnt lgkmcnt(0)")
    e("s_cmp_eq_u32 s51, 2\ns_cbranch_scc1 L_k2_store")
    e(f"v_mul_f32 v8, s54, v{OA+8}\nv_mul_f32 v8, 0, v8")
    for k in range(8): e(f"v_fma_f32 v8, v{OA+k}, 0, v8")
    e(f"v_mul_f32 v9, s54, v{OB+8}\nv_fma_f32 v8, v9, 0, v8")
    for k in range(8): e(f"v_fma_f32 v8, v{OB+k}, 0, v8")
    e("v_cmp_u_f32 vcc, v8, v8\ns_nop 4\ns_cbranch_vccz L_k2_store")
    e("s_mov_b32 s51, 2\ns_mov_b32 s52, 0\ns_mov_b32 s53, 64\nv_mov_b32 v3, v6\nv_mov_b32 v8, 0xff800000\nv_mov_b32 v9, 0xff800000")
    e("L_k2_mx:")
    e(f"ds_read_b128 {vr(KB[0],4)}, v3\nv_add_u32 v3, 1024, v3\ns_waitcnt lgkmcnt(0)")
    e(f"{MFMA} {vr(SA,16)}, {vr(KB[0],4)}, {vr(QA,4)}, 0")
    e(f"{MFMA} {vr(SB,16)}, {vr(KB[0],4)}, {vr(QB,4)}, 0")
    e("s_nop 11")
    maxtree(SA, 8, False); maxtree(SB, 9, False)
    e("s_sub_u32 s53, s53, 1\ns_cmp_lg_u32 s53, 0\ns_cbranch_scc1 L_k2_mx")
    e("s_branch L_k2_setmax")
    e("L_k2_store:")
    e("s_nop 7")
    e(f"v_rcp_f32 v8, v{OA+8}\nv_rcp_f32 v10, v{OB+8}")
    e(f"s_add_u32 s60, s50, {WS_O}")
    for k in range(8): e(f"v_mul_f32 v{OA+k}, v8, v{OA+k}")
    for k in range(8): e(f"v_mul_f32 v{OB+k}, v10, v{OB+k}")
    for k in range(4): e(f"v_cvt_pk_bf16_f32 v{SA+k}, v{OA+2*k}, v{OA+2*k+1}")
    for k in range(4): e(f"v_cvt_pk_bf16_f32 v{SA+4+k}, v{OB+2*k}, v{OB+2*k+1}")
    e(f"buffer_store_dwordx4 {vr(SA,4)}, v6, s[40:43], s60 offen")
    e(f"buffer_store_dwordx4 {vr(SA+4,4)}, v6, s[40:43], s60 offen offset:1024")
    stamp(e, 5)
    e("s_barrier\ns_barrier")
    stamp(e, 6)
    e("s_branch L_k2_red")
    e("L_k2_g:")
    e("s_sub_u32 s48, s3, 4")
    e(f"s_mul_i32 s61, s48, 3072\ns_add_u32 s61, s61, {LV}\ns_mov_b32 m0, s61\ns_add_u32 s61, s61, {WS_K}")
    for q in range(3): e(f"buffer_load_dwordx4 v6, s[40:43], s61 offen offset:{q*1024} lds")
    e("s_mul_i32 s62, s48, 13\ns_add_u32 s62, s62, 12\ns_lshl_b32 s62, s62, 10")
    e("s_mul_i32 s63, s48, 14\ns_min_u32 s63, s63, 40\ns_add_u32 s63, s63, 76\ns_lshl_b32 s63, s63, 10")
    for grp in range(4):
        for (sreg, n) in ((62, 13), (63, 14)):
            e(f"s_mov_b32 m0, s{sreg}\ns_add_u32 s61, s{sreg}, {WS_K}")
            for q in range(4):
                if grp*4 + q < n: e(f"buffer_load_dwordx4 v6, s[40:43], s61 offen offset:{q*1024} lds")
            if grp < 3: e(f"s_add_u32 s{sreg}, s{sreg}, 4096")
    e(f"s_mul_i32 s49, s48, 7680\ns_add_u32 s49, s49, {LG}")
    g_addr(e, 49)
    srd(e, 36, sWD, 1835008)
    e(f"s_mul_i32 s60, s4, 224\ns_mul_i32 s61, s48, 28\ns_add_u32 s60, s60, s61\ns_lshl_b32 s60, s60, 10\ns_add_u32 s60, s60, {WS_H}")
    e(f"v_add_u32 v7, s60, v6\nv_add_u32 v8, {112*1024}, v7")
    e(f"s_mul_i32 s56, s48, {28*16*1024}\ns_mov_b32 s57, 0")
    e("s_waitcnt vmcnt(27)\ns_barrier")
    GACC, WST, HST, AF = 16, 80, 144, 208
    def gloads(st):
        b = st & 1
        for k in range(4):
            for q in range(2):
                e(f"buffer_load_dwordx4 {vr(WST+b*32+k*8+q*4,4)}, v2, s[36:39], s56 offen")
                e("s_add_u32 s56, s56, 8192")
            for tt in range(2):
                e(f"buffer_load_dwordx4 {vr(HST+b*32+k*8+tt*4,4)}, v{7+tt}, s[40:43], s57 offen offset:{k*1024}")
        e("s_add_u32 s57, s57, 4096")
    gloads(0); gloads(1)
    e("s_waitcnt vmcnt(32)")
    stamp(e, 1)
    e("s_barrier")
    stamp(e, 2)
    for st in range(7):
        b = st & 1
        for kp in range(2):
            rem = (16 if st < 6 else 0) + (8 if kp == 0 else 0)
            e(f"s_waitcnt vmcnt({rem})")
            for k2_ in range(2):
                for q in range(2):
                    e(f"ds_write_b128 v3, {vr(WST+b*32+(kp*2+k2_)*8+q*4,4)} offset:{k2_*2048+q*1024}")
            for k2_ in range(2):
                for mt in range(2):
                    for tp in range(2):
                        e(f"ds_read_b64_tr_b16 {vr(AF+k2_*8+mt*4+tp*2,2)}, v{4+mt} offset:{k2_*2048+tp*1024}")
            e("s_waitcnt lgkmcnt(0)")
            for k2_ in range(2):
                for tt in range(2):
                    for mt in range(2):
                        a = GACC + (tt*2+mt)*16
                        cc = "0" if (st == 0 and kp == 0 and k2_ == 0) else vr(a,16)
                        e(f"{MFMA} {vr(a,16)}, {vr(AF+k2_*8+mt*4,4)}, {vr(HST+b*32+(kp*2+k2_)*8+tt*4,4)}, {cc}")
        if st + 2 < 7: gloads(st + 2)
    stamp(e, 3)
    e("s_barrier")
    g_write_partials(e, GACC, 48)
    e("s_waitcnt lgkmcnt(0)\ns_barrier")
    e("L_k2_red:")
    e("s_lshl_b32 s60, s3, 6\nv_add_u32 v9, s60, v0")
    reduce_partials(e, 9, 16, 24)
    e(f"s_mov_b32 s60, {f2h(-math.log2(math.e))}")
    for k in range(8): e(f"v_mul_f32 v{24+k}, s60, v{16+k}")
    for k in range(8): e(f"v_exp_f32 v{24+k}, v{24+k}")
    for k in range(8): e(f"v_add_f32 v{24+k}, 1.0, v{24+k}")
    for k in range(8): e(f"v_rcp_f32 v{24+k}, v{24+k}")
    for k in range(8): e(f"v_mul_f32 v{16+k}, v{16+k}, v{24+k}")
    e(f"s_lshl_b32 s60, s2, 14\ns_add_u32 s60, s60, {WS_G}\nv_lshlrev_b32 v9, 5, v9")
    e("buffer_store_dwordx4 v[16:19], v9, s[40:43], s60 offen\nbuffer_store_dwordx4 v[20:23], v9, s[40:43], s60 offen offset:16")
    endpgm(e, 1); e(f"{done}:")
    e("s_endpgm")

def k3(e, cfg):
    done = "L_k3_done"
    prologue(e, "p3_kernel", done)
    map23(e)
    e("s_lshl_b32 s60, s3, 6\nv_add_u32 v9, s60, v0      ; tid")
    e("s_waitcnt lgkmcnt(0)")
    srd(e, 40, sWS, WS_SIZE); srd(e, 32, sX, 2097152); srd(e, 44, sOUT, 2097152)
    GT, XR, OA_ = 232, 240, 244
    e(f"v_lshrrev_b32 v10, 3, v9\nv_and_b32 v11, 7, v9\nv_lshlrev_b32 v{OA_}, 10, v10\nv_lshl_add_u32 v{OA_}, v11, 4, v{OA_}")
    e("s_lshl_b32 s55, s4, 16\ns_lshl_b32 s60, s5, 7\ns_add_u32 s55, s55, s60")
    e("s_cmp_lt_u32 s3, 4\ns_cbranch_scc1 L_k3_nog")
    e("s_sub_u32 s48, s3, 4")
    e("s_lshl_b32 s49, s48, 14\ns_add_u32 s49, s49, 65536")
    g_addr(e, 49)
    srd(e, 36, sWO, 524288)
    GACC, WST, HST = 16, 80, 144
    e(f"s_lshl_b32 s56, s48, 17")
    e(f"s_lshl_b32 s60, s4, 6\ns_lshl_b32 s61, s48, 3\ns_add_u32 s60, s60, s61\ns_lshl_b32 s60, s60, 10\ns_add_u32 s60, s60, {WS_O}")
    e("v_add_u32 v7, s60, v6\nv_add_u32 v8, 32768, v7\ns_mov_b32 s57, 0\ns_mov_b32 s58, 4096")
    for k in range(8):
        for q in range(2):
            e(f"buffer_load_dwordx4 {vr(WST+k*8+q*4,4)}, v2, s[36:39], s56 offen")
            e("s_add_u32 s56, s56, 8192")
    for k in range(8):
        for tt in range(2):
            e(f"buffer_load_dwordx4 {vr(HST+k*8+tt*4,4)}, v{7+tt}, s[40:43], s{57+(k>>2)} offen offset:{(k&3)*1024}")
    e("L_k3_nog:")
    e(f"s_lshl_b32 s60, s2, 14\ns_add_u32 s60, s60, {WS_G}\nv_lshlrev_b32 v10, 5, v9")
    e(f"buffer_load_dwordx4 {vr(GT,4)}, v10, s[40:43], s60 offen\nbuffer_load_dwordx4 {vr(GT+4,4)}, v10, s[40:43], s60 offen offset:16")
    e(f"buffer_load_dwordx4 {vr(XR,4)}, v{OA_}, s[32:35], s55 offen")
    e("s_cmp_lt_u32 s3, 4\ns_cbranch_scc1 L_k3_wait")
    for k in range(8):
        e(f"s_waitcnt vmcnt({19 + 14 - 2*k})")
        for q in range(2):
            e(f"ds_write_b128 v3, {vr(WST+k*8+q*4,4)} offset:{k*2048+q*1024}")
    for k in range(8):
        for mt in range(2):
            for tp in range(2):
                e(f"ds_read_b64_tr_b16 {vr(WST+k*8+mt*4+tp*2,2)}, v{4+mt} offset:{k*2048+tp*1024}")
    e("s_waitcnt lgkmcnt(0)")
    for k in range(8):
        e(f"s_waitcnt vmcnt({3 + 14 - 2*k})")
        for tt in range(2):
            for mt in range(2):
                a = GACC + (tt*2+mt)*16
                cc = "0" if k == 0 else vr(a,16)
                e(f"{MFMA} {vr(a,16)}, {vr(WST+k*8+mt*4,4)}, {vr(HST+k*8+tt*4,4)}, {cc}")
    g_write_partials(e, GACC, 48)
    e("s_waitcnt lgkmcnt(0)")
    e("L_k3_wait:")
    stamp(e, 1)
    e("s_barrier")
    reduce_partials(e, 9, 16, 24)
    e("s_waitcnt vmcnt(0)\ns_mov_b32 s59, 0xffff0000")
    for k in range(4):
        e(f"v_lshlrev_b32 v{24+2*k}, 16, v{XR+k}\nv_and_b32 v{25+2*k}, s59, v{XR+k}")
    for k in range(8): e(f"v_fmac_f32 v{24+k}, v{16+k}, v{GT+k}")
    for k in range(4): e(f"v_cvt_pk_bf16_f32 v{16+k}, v{24+2*k}, v{25+2*k}")
    e(f"buffer_store_dwordx4 v[16:19], v{OA_}, s[44:47], s55 offen")
    endpgm(e, 2); e(f"{done}:")
    e("s_endpgm")

def build(cfg):
    global STAMP
    STAMP = bool(cfg.get("stamp", 0))
    e = Asm()
    hdr = open("cdna_kernels/" + NAME + ".s.ref").read().split("; Override launch")[0]
    out = hdr
    out += "; @launch kernel=p1_kernel grid=(256,1,1) block=(512,1,1) lds=163840\n"
    out += "; @launch kernel=p2_kernel grid=(256,1,1) block=(512,1,1) lds=163840\n"
    out += "; @launch kernel=p3_kernel grid=(256,1,1) block=(512,1,1) lds=131072\n"
    out += '.amdgcn_target "amdgcn-amd-amdhsa--gfx950"\n.text\n'
    k1(e, cfg); k2(e, cfg); k3(e, cfg)
    out += e.text()
    out += '.section .rodata,"a"\n' + kd("p1_kernel", 256) + kd("p2_kernel", 256) + kd("p3_kernel", 256)
    return out

if __name__ == "__main__":
    cfg = {}
    dst = sys.argv[1] if len(sys.argv) > 1 else "cdna_kernels/" + NAME + ".s"
    for a in sys.argv[2:]:
        k, v = a.split("="); cfg[k] = int(v) if v.isdigit() else v
    open(dst, "w").write(build(cfg))
    print("wrote", dst)
```

```python
import sys, math
from asmlib import *

NAME = "recurrent_scan__grouped_kv_mqa__glu_gated_geglu__prompt"
WS_Q, WS_O, WS_K, WS_V, WS_H = 0, 0x200000, 0x400000, 0x410000, 0x500000
WS_FH, WS_FO = 0x480000, 0x482000
WS_SIZE = 0x10000000
VG = 528; VT = 2*VG
QSCALE = 0.25 * math.log2(math.e)
sX, sWQ, sWK, sWV, sWO, sWG, sWU, sWD, sOUT, sDBG, sWS = 8, 10, 12, 14, 16, 20, 22, 24, 26, 28, 30
MFMA = "v_mfma_f32_32x32x16_bf16"
SMF = "v_smfmac_f32_32x32x32_bf16"
STAMP = 0
WS_T = 0xF000000
SPIN = 1 << 17
def stamp(e, idx):
    if STAMP and STAMP != 3:
        e(f"{'s_memtime' if STAMP==2 else 's_memrealtime'} s[{100}:{101}]")
        e("s_waitcnt lgkmcnt(0)")
        e(f"s_mov_b32 s{80+idx}, s100")
NST = 16
def endpgm(e):
    if STAMP:
        stamp(e, 14)
        e("s_waitcnt vmcnt(0)")
        stamp(e, 15)
        e(f"s_lshl_b32 s60, s2, 9\ns_lshl_b32 s61, s3, 6\ns_add_u32 s60, s60, s61\ns_add_u32 s60, s60, {WS_T}")
        e("v_mov_b32 v1, 0")
        for k in range(NST):
            e(f"v_mov_b32 v2, s{80+k if STAMP != 3 else min(80+2*k,98)}\nbuffer_store_dword v2, v1, s[40:43], s60 offen offset:{4*k}\ns_nop 1")
    e("s_endpgm")

def poll(e, vaddr, srdp, soff, mask_lo, mask_hi=None, tmp=10):
    L = e.new("poll"); D = e.new("polled")
    e(f"s_mov_b32 s62, {SPIN}")
    e(f"{L}:")
    e(f"buffer_load_dword v{tmp}, v{vaddr}, s[{srdp}:{srdp+3}], {soff} offen sc1")
    e("s_waitcnt vmcnt(0)")
    e(f"v_cmp_ne_u32 vcc, 0, v{tmp}")
    e("s_nop 3")
    e(f"s_and_b32 s63, vcc_lo, {mask_lo}")
    e(f"s_cmp_eq_u32 s63, {mask_lo}")
    e(f"s_cbranch_scc1 {D}")
    e("s_sub_u32 s62, s62, 1\ns_cmp_lg_u32 s62, 0")
    e(f"s_cbranch_scc1 {L}")
    e(f"{D}:")

XN, WR, WKV = 0, 32768, 131072
NSLOT = 6
LK, LV, LG = 0, 65536, 65536 + 128*VG

def p1_helper(e, cfg):
    X = 64
    def xr(r, c): return X + r * 32 + c * 4
    e("v_lshrrev_b32 v1, 3, v0\nv_and_b32 v2, 7, v0")
    e("s_lshl_b32 s60, s4, 7\ns_lshl_b32 s61, s3, 5\ns_add_u32 s60, s60, s61")
    e("v_add_u32 v3, s60, v1\nv_lshlrev_b32 v3, 10, v3\nv_lshl_add_u32 v3, v2, 4, v3")
    for r in range(4):
        e(f"s_add_u32 s60, s5, {r}\ns_and_b32 s{52+r}, s60, 3\ns_lshl_b32 s60, s{52+r}, 13\nv_add_u32 v{40+r}, s60, v3")
    for c in range(8):
        e(f"s_add_u32 s60, s4, {c}\ns_and_b32 s60, s60, 7\ns_lshl_b32 s{64+c}, s60, 7")
    e("s_waitcnt lgkmcnt(0)")
    srd(e, 32, sX, 2097152)
    def xload(n):
        r, c = n >> 3, n & 7
        e(f"buffer_load_dwordx4 {vr(xr(r,c),4)}, v{40+r}, s[32:35], s{64+c} offen")
    LOOK = cfg.get("look", 12)
    for n in range(LOOK): xload(n)
    srd(e, 40, sWS, WS_SIZE)
    e("s_lshr_b32 s62, s3, 1\ns_and_b32 s63, s3, 1")
    e("s_cmp_ge_u32 s5, 14\ns_cbranch_scc1 L_hq")
    e("s_cmp_eq_u32 s62, 0")
    e(f"s_cselect_b32 s36, s{sWG}, s{sWU}\ns_cselect_b32 s37, s{sWG+1}, s{sWU+1}")
    e("s_mov_b32 s38, 1835008\ns_mov_b32 s72, 3584\ns_lshl_b32 s73, s5, 8")
    e("s_branch L_hw")
    e("L_hq:")
    e(f"s_mov_b32 s36, s{sWQ}\ns_mov_b32 s37, s{sWQ+1}\ns_mov_b32 s38, 524288\ns_mov_b32 s72, 1024")
    e("s_sub_u32 s73, s5, 14\ns_lshl_b32 s73, s73, 9\ns_lshl_b32 s60, s62, 8\ns_add_u32 s73, s73, s60")
    e("L_hw:")
    e("s_mov_b32 s39, 0x00020000")
    e("s_lshl_b32 s60, s63, 7\ns_add_u32 s73, s73, s60")
    e("s_lshl_b32 s60, s62, 2")
    e("v_and_b32 v4, 2, v1\nv_or_b32 v4, s60, v4\nv_xor_b32 v4, v4, v2\nv_lshlrev_b32 v4, 4, v4")
    e("v_mul_lo_u32 v7, v1, s72\nv_add3_u32 v4, v4, v7, s73")
    e("s_lshl_b32 s57, s72, 3        ; 8 rows")
    e("s_and_b32 s60, s4, 7\ns_lshl_b32 s60, s60, 3\ns_mul_i32 s56, s60, s57")
    e("s_lshl_b32 s74, s72, 9        ; 512 rows")
    e(f"s_lshl_b32 s58, s3, 12\ns_add_u32 s58, s58, {WR}")
    def wdma1(stage, q):
        slot = stage % NSLOT
        e(f"s_add_u32 m0, s58, {slot*16384 + q*1024}")
        if q == 0 and stage > 0 and stage % 2 == 0:
            e("s_cmp_ge_u32 s56, s74\ns_cselect_b32 s56, 0, s56")
        else:
            e("s_nop 0")
        e("buffer_load_dwordx4 v4, s[36:39], s56 offen lds")
        e("s_add_u32 s56, s56, s57")
    e("s_lshl_b32 s60, s3, 12")
    e("v_lshrrev_b32 v5, 1, v1\nv_xor_b32 v5, v5, v2\nv_lshlrev_b32 v5, 4, v5\nv_lshl_add_u32 v5, v1, 7, v5\nv_add_u32 v5, s60, v5")
    for r in range(4):
        e(f"s_and_b32 s61, s{52+r}, 1\ns_lshl_b32 s61, s61, 6\ns_lshl_b32 s62, s{52+r}, 10\nv_xor_b32 v6, s61, v5\nv_add_u32 v{44+r}, s62, v6")
    e("s_mov_b32 s59, 0xffff0000\ns_mov_b32 s75, 0x3f803f80")
    e(f"s_mov_b32 s76, {f2h(1/512)}\ns_mov_b32 s77, {f2h(1e-5)}")
    def norm_ops(r, c, pk=False):
        b = xr(r, c); o = []
        for k in range(4):
            o += [f"v_lshlrev_b32 v{32+2*k}, 16, v{b+k}", f"v_and_b32 v{33+2*k}, s59, v{b+k}"]
        for k in range(8):
            o.append(f"v_fma_f32 v{32+k}, v{32+k}, v{16+r}, -v{20+r}")
        for k in range(4):
            o.append(f"v_cvt_pk_bf16_f32 v{b+k}, v{32+2*k}, v{33+2*k}")
        o.append(f"ds_write_b128 v{44+r}, {vr(b,4)} offset:{XN + (c&1)*16384}")
        return o
    PRE = cfg.get("pre", 3)
    rest = [("x", n) for n in range(LOOK, 32)] + [("w", st, q) for st in range(PRE) for q in range(4)]
    issued = LOOK
    for r in range(4):
        e(f"v_mov_b32 v8, 0\nv_mov_b32 v9, 0")
        for c in range(8):
            n = r*8 + c
            e(f"s_waitcnt vmcnt({issued - n - 1})")
            for k in range(4):
                e(f"v_dot2c_f32_bf16 v8, s75, v{xr(r,c)+k}")
                e(f"v_dot2c_f32_bf16 v9, v{xr(r,c)+k}, v{xr(r,c)+k}")
            if rest:
                it = rest.pop(0); issued += 1
                if it[0] == "x": xload(it[1])
                else: wdma1(it[1], it[2])
        e("s_nop 2")
        for dpp in ("quad_perm:[1,0,3,2]", "quad_perm:[2,3,0,1]", "row_half_mirror"):
            e(f"v_add_f32_dpp v8, v8, v8 {dpp} row_mask:0xf bank_mask:0xf")
            e(f"v_add_f32_dpp v9, v9, v9 {dpp} row_mask:0xf bank_mask:0xf")
            e("s_nop 0")
        e(f"v_mul_f32 v8, s76, v8\nv_mul_f32 v10, v8, v8\nv_fma_f32 v10, v9, s76, -v10\nv_max_f32 v10, 0, v10\nv_add_f32 v10, s77, v10")
        e(f"v_rsq_f32 v{16+r}, v10\ns_nop 0\nv_mul_f32 v{20+r}, v8, v{16+r}")
        for o in norm_ops(r, 0): e(o)
    while rest:
        it = rest.pop(0); issued += 1
        wdma1(it[1], it[2])
    stamp(e, 1)
    e("s_cmp_eq_u32 s5, 14\ns_cbranch_scc1 L_hkv")
    KVACC, KVB, KVA = 192, 208, 216
    def loop(kv):
        nxt = PRE
        for t in range(16):
            fine = cfg.get("fine") is not None and not kv
            if fine and t == cfg["fine"] + 1: e("s_memtime s[90:91]")
            if fine and t == cfg["fine"] + 1: e("s_waitcnt lgkmcnt(0)\ns_memtime s[92:93]")
            e(f"s_waitcnt vmcnt({4*(nxt - t - 1)}) lgkmcnt(0)")
            if fine and t == cfg["fine"] + 1: e("s_memtime s[94:95]")
            e("s_barrier")
            if fine and t == cfg["fine"] + 1: e("s_memtime s[96:97]")
            if fine and t == cfg["fine"]: e("s_memtime s[80:81]")
            if kv:
                for s2 in range(2):
                    s = 2*t + s2
                    e(f"ds_read_b128 {vr(KVB+4*s2,4)}, v{28+(s&3)} offset:{XN + ((s>>2)&1)*16384}")
                    for tp in range(2):
                        e(f"ds_read_b64_tr_b16 {vr(KVA+4*s2+2*tp,2)}, v27 offset:{s*512 + tp*128}")
            dm = []
            lim = min(16, t + NSLOT)
            cnt = 0
            while nxt < lim and cnt < 2 and (cnt < 1 or t % 2 == 0):
                dm += [(nxt, q) for q in range(4)]; nxt += 1; cnt += 1
            c = (t >> 1) + 1
            ops = []
            if c < 8:
                for r in (2*(t&1), 2*(t&1)+1): ops += norm_ops(r, c)
            step = max(1, len(ops) // max(1, len(dm)))
            for k, o in enumerate(ops):
                if k % step == 0 and dm:
                    wdma1(*dm.pop(0))
                    if fine and t == cfg["fine"]: e(f"s_memtime s[{88-2*len(dm)}:{89-2*len(dm)}]")
                e(o)
            while dm: wdma1(*dm.pop(0))
            if kv:
                e("s_waitcnt lgkmcnt(0)")
                for s2 in range(2):
                    cc = "0" if (t == 0 and s2 == 0) else vr(KVACC,16)
                    e(f"{MFMA} {vr(KVACC,16)}, {vr(KVA+4*s2,4)}, {vr(KVB+4*s2,4)}, {cc}")
    loop(False)
    e("s_branch L_hend")
    e("L_hkv:")
    e("s_lshl_b32 s60, s3, 12")
    e("v_and_b32 v24, 31, v0\nv_lshrrev_b32 v25, 5, v0\nv_bfe_u32 v26, v0, 1, 3\nv_xor_b32 v26, v26, v25\nv_lshlrev_b32 v26, 4, v26")
    e("v_lshl_add_u32 v26, v24, 7, v26\nv_add_u32 v28, s60, v26\nv_xor_b32 v29, 32, v28\nv_xor_b32 v30, 64, v28\nv_xor_b32 v31, 96, v28")
    e("v_bfe_u32 v26, v0, 4, 1\nv_lshlrev_b32 v26, 14, v26\nv_lshl_add_u32 v26, v25, 8, v26\nv_and_b32 v27, 15, v0\nv_lshl_add_u32 v27, v27, 3, v26")
    e(f"v_add_u32 v27, {WKV}, v27")
    loop(True)
    e("s_lshl_b32 s60, s4, 2\ns_add_u32 s60, s60, s3")
    e(f"s_lshl_b32 s61, s60, 10\ns_add_u32 s61, s61, {WS_K}")
    e(f"s_mul_i32 s62, s60, {VT}\ns_add_u32 s62, s62, {WS_V}")
    e("v_lshlrev_b32 v32, 4, v0")
    e("s_lshl_b32 s63, s3, 10")
    e("v_bfe_u32 v33, v0, 3, 2\nv_lshlrev_b32 v33, 8, v33\nv_lshl_add_u32 v33, v25, 6, v33\nv_and_b32 v34, 7, v0\nv_lshl_add_u32 v33, v34, 1, v33\nv_add_u32 v33, s63, v33")
    e("v_add_u32 v35, s63, v32")
    e(f"v_mul_u32_u24 v36, {VG}, v25\nv_lshl_add_u32 v37, v24, 4, v36")
    e("v_mov_b32 v40, s75\nv_mov_b32 v41, s75\nv_mov_b32 v42, s75\nv_mov_b32 v43, s75")
    for r in range(8):
        e(f"v_cvt_pk_bf16_f32 v{44+r}, v{KVACC+2*r}, v{KVACC+2*r+1}")
    e("buffer_store_dwordx4 v[44:47], v32, s[40:43], s61 offen sc1")
    for r in range(4):
        d0 = (2*r & 3) + 8*((2*r) >> 2)
        e(f"ds_write_b16 v33, v{48+r} offset:{XN + d0*16}")
        e(f"ds_write_b16_d16_hi v33, v{48+r} offset:{XN + (d0+1)*16}")
    e(f"ds_read_b128 v[52:55], v35 offset:{XN}")
    e("s_mov_b32 s60, 1\ns_mov_b32 s61, 1\ns_mov_b64 exec, s[60:61]")
    e("buffer_store_dwordx4 v[40:43], v36, s[40:43], s62 offen offset:512 sc1")
    e("s_mov_b64 exec, -1")
    e("s_waitcnt lgkmcnt(0)")
    e("buffer_store_dwordx4 v[52:55], v37, s[40:43], s62 offen sc1")
    e("L_hend:")
    stamp(e, 2)

def p1_compute(e, cfg):
    ACC, FB = 64, 192
    def acc(tt, gi): return ACC + (tt*2 + gi)*16
    def fb(b, tt): return FB + b*24 + tt*4
    def fa(b, gi): return FB + b*24 + 16 + gi*4
    e("v_and_b32 v10, 31, v0\nv_lshrrev_b32 v11, 5, v0\nv_bfe_u32 v12, v0, 1, 3\nv_xor_b32 v12, v12, v11\nv_lshlrev_b32 v12, 4, v12")
    e("v_lshl_add_u32 v2, v10, 7, v12\nv_xor_b32 v3, 32, v2\nv_xor_b32 v4, 64, v2\nv_xor_b32 v5, 96, v2")
    e("v_bfe_u32 v12, v0, 4, 1\nv_bfe_u32 v13, v0, 2, 2\nv_and_b32 v14, 3, v0")
    e("s_and_b32 s60, s48, 1\ns_lshl_b32 s60, s60, 1\ns_lshr_b32 s61, s48, 1\ns_lshl_b32 s61, s61, 12")
    e(f"s_add_u32 s61, s61, {WR}")
    e("v_lshrrev_b32 v15, 1, v13\nv_lshl_or_b32 v15, v12, 1, v15\nv_xor_b32 v15, s60, v15\nv_lshlrev_b32 v15, 5, v15")
    e("v_lshl_add_u32 v15, v14, 3, v15\nv_lshl_add_u32 v15, v13, 7, v15\nv_lshl_add_u32 v15, v11, 10, v15\nv_lshl_add_u32 v15, v12, 13, v15")
    e("v_add_u32 v6, s61, v15\nv_xor_b32 v7, 32, v6\nv_add_u32 v8, 49152, v6\nv_add_u32 v9, 49152, v7")
    e("s_waitcnt lgkmcnt(0)")
    srd(e, 40, sWS, WS_SIZE)
    e("s_cmp_lg_u32 s5, 14\ns_cbranch_scc1 L_nokvdma")
    e("v_lshlrev_b32 v16, 2, v0\nv_mov_b32 v17, 0")
    e(f"s_lshl_b32 s60, s4, 8\ns_min_u32 s61, s48, 1\ns_mul_i32 s61, s61, {WS_FO-WS_FH}\ns_add_u32 s60, s60, s61\ns_add_u32 s60, s60, {WS_FH}")
    e("buffer_store_dword v17, v16, s[40:43], s60 offen sc1")
    e("s_cmp_lt_u32 s48, 2")
    e(f"s_cselect_b32 s44, s{sWK}, s{sWV}\ns_cselect_b32 s45, s{sWK+1}, s{sWV+1}\ns_mov_b32 s46, 16384\ns_mov_b32 s47, 0x00020000")
    e("v_lshlrev_b32 v16, 4, v0")
    e("s_and_b32 s60, s48, 1\ns_lshl_b32 s60, s60, 13\ns_lshl_b32 s62, s4, 11\ns_add_u32 s60, s60, s62")
    e(f"s_lshl_b32 s61, s48, 13\ns_add_u32 s61, s61, {WKV}")
    for q in range(8):
        e(f"s_add_u32 m0, s61, {q*1024}\ns_and_b32 s60, s60, 16383")
        e("buffer_load_dwordx4 v16, s[44:47], s60 offen lds")
        e("s_add_u32 s60, s60, 1024")
    e("s_waitcnt vmcnt(0)")
    e("L_nokvdma:")
    def reads(s):
        b = s & 1
        st = s >> 1; slot = st % NSLOT
        out = []
        for gi in range(2):
            for tp in range(2):
                out.append(f"ds_read_b64_tr_b16 {vr(fa(b,gi)+2*tp,2)}, v{6+gi+2*(slot//3)} offset:{(slot%3)*16384 + (s&1)*2048 + tp*512}")
        xr_ = [f"ds_read_b128 {vr(fb(b,tt),4)}, v{2+(s&3)} offset:{XN + ((s>>2)&1)*16384 + tt*4096}" for tt in range(4)]
        return [out[0], out[1], xr_[0], out[2], out[3], xr_[1], xr_[2], xr_[3]]
    e("s_barrier")
    stamp(e, 1)
    for r in reads(0): e(r)
    e("s_waitcnt lgkmcnt(0)")
    for s in range(32):
        b = s & 1
        rd = reads(s+1) if s + 1 < 32 else []
        mi = 0
        for tt in range(4):
            for gi in range(2):
                cc = "0" if s == 0 else vr(acc(tt,gi),16)
                e(f"{MFMA} {vr(acc(tt,gi),16)}, {vr(fa(b,gi),4)}, {vr(fb(b,tt),4)}, {cc}")
                if mi == 0 and rd and (s+1) % 2 == 0:
                    e("s_barrier")
                if rd and mi < 4:
                    e(rd[2*mi]); e(rd[2*mi+1])
                mi += 1
        if rd: e("s_waitcnt lgkmcnt(0)")
    stamp(e, 2)
    e("v_lshlrev_b32 v2, 4, v0")
    e("s_cmp_ge_u32 s5, 14\ns_cbranch_scc1 L_epq")
    GA = -2*math.sqrt(2/math.pi)*math.log2(math.e); GB = GA*0.044715
    e(f"v_mov_b32 v4, {f2h(GA)}\nv_mov_b32 v5, {f2h(GA)}\nv_mov_b32 v6, {f2h(GB)}\nv_mov_b32 v7, {f2h(GB)}\nv_mov_b32 v8, 1.0\nv_mov_b32 v9, 1.0")
    e(f"s_mul_i32 s60, s4, 448\ns_lshl_b32 s61, s5, 3\ns_add_u32 s60, s60, s61\ns_lshl_b32 s61, s48, 1\ns_add_u32 s60, s60, s61\ns_lshl_b32 s60, s60, 10\ns_add_u32 s60, s60, {WS_H}")
    T = 16
    for tt in range(4):
        for gi in range(2):
            a = acc(tt, gi); o = 32 + ((tt*2+gi) & 1)*4
            P = lambda x: vr(x, 2)
            for k in range(4): e(f"v_pk_mul_f32 {P(T+2*k)}, {P(a+2*k)}, {P(a+2*k)}")
            for k in range(4): e(f"v_pk_fma_f32 {P(T+2*k)}, {P(T+2*k)}, v[6:7], v[4:5]")
            for k in range(4): e(f"v_pk_mul_f32 {P(T+2*k)}, {P(T+2*k)}, {P(a+2*k)}")
            for k in range(4):
                e(f"v_exp_f32 v{T+2*k}, v{T+2*k}\nv_exp_f32 v{T+2*k+1}, v{T+2*k+1}")
                e(f"v_pk_mul_f32 {P(a+2*k)}, {P(a+2*k)}, {P(a+8+2*k)}")
            for k in range(4): e(f"v_pk_add_f32 {P(T+2*k)}, {P(T+2*k)}, v[8:9]")
            for k in range(8): e(f"v_rcp_f32 v{T+k}, v{T+k}")
            for k in range(4): e(f"v_pk_mul_f32 {P(a+2*k)}, {P(a+2*k)}, {P(T+2*k)}")
            for k in range(4): e(f"v_cvt_pk_bf16_f32 v{o+k}, v{a+2*k}, v{a+2*k+1}")
            e(f"buffer_store_dwordx4 {vr(o,4)}, v2, s[40:43], s60 offen offset:{gi*1024} sc1")
        if tt < 3: e(f"s_add_u32 s60, s60, {112*1024}")
    e("s_branch L_cend")
    e("L_epq:")
    e(f"v_mov_b32 v4, {f2h(QSCALE)}\nv_mov_b32 v5, {f2h(QSCALE)}")
    e(f"s_lshl_b32 s60, s4, 7\ns_sub_u32 s61, s5, 14\ns_lshl_b32 s61, s61, 4\ns_add_u32 s60, s60, s61\ns_lshl_b32 s61, s48, 1\ns_add_u32 s60, s60, s61\ns_lshl_b32 s60, s60, 10")
    e("s_add_u32 s61, s60, 8192")
    for tt in range(4):
        for gi in range(2):
            a = acc(tt, gi); o = 32 + ((tt*2+gi) & 1)*8
            for k in range(8): e(f"v_pk_mul_f32 {vr(a+2*k,2)}, {vr(a+2*k,2)}, v[4:5]")
            for k in range(8): e(f"v_cvt_pk_bf16_f32 v{o+k}, v{a+2*k}, v{a+2*k+1}")
            e(f"buffer_store_dwordx4 {vr(o,4)}, v2, s[40:43], s60 offen offset:{gi*1024} sc1")
            e(f"buffer_store_dwordx4 {vr(o+4,4)}, v2, s[40:43], s61 offen offset:{gi*1024} sc1")
        if tt < 3: e("s_add_u32 s60, s60, 32768\ns_add_u32 s61, s61, 32768")
    e("s_waitcnt vmcnt(0)\ns_barrier       ; EQ")
    e("L_cend:")
    stamp(e, 3)

def g_addr(e, lbase_sgpr):
    e("v_lshrrev_b32 v10, 3, v0\nv_and_b32 v11, 7, v0")
    e("s_lshl_b32 s60, s7, 7")
    e("v_lshlrev_b32 v2, 10, v10\nv_lshl_add_u32 v2, v11, 4, v2\nv_add_u32 v2, s60, v2")
    e("v_and_b32 v12, 2, v10\nv_lshlrev_b32 v12, 1, v12\nv_xor_b32 v12, v12, v11\nv_lshlrev_b32 v12, 4, v12\nv_lshl_add_u32 v3, v10, 7, v12")
    e(f"v_add_u32 v3, s{lbase_sgpr}, v3")
    e("v_bfe_u32 v12, v0, 2, 2\nv_lshrrev_b32 v13, 5, v0\nv_lshl_add_u32 v13, v13, 2, v12\nv_lshlrev_b32 v4, 7, v13")
    e("v_lshrrev_b32 v12, 1, v12\nv_lshl_add_u32 v4, v12, 6, v4\nv_bfe_u32 v12, v0, 4, 1\nv_lshl_add_u32 v4, v12, 5, v4\nv_and_b32 v12, 3, v0\nv_lshl_add_u32 v4, v12, 3, v4")
    e(f"v_add_u32 v4, s{lbase_sgpr}, v4\nv_xor_b32 v5, 64, v4")

def phase2_a(e, cfg):
    U = cfg.get("U", 8)
    OFF = float(cfg.get("off", 96))
    SA, SB, CA, CB, OA, OB, QA, QB = 16, 32, 48, 64, 80, 96, 112, 116
    KB = [120, 124]; V1 = [128, 132]; V2 = [136, 140]
    e("s_cmp_lt_u32 s5, 14\ns_cbranch_scc1 L_a_nopub")
    e("s_waitcnt vmcnt(0)\ns_barrier       ; EQ")
    e("L_a_nopub:")
    e("v_lshlrev_b32 v6, 4, v0")
    e("s_cmp_lg_u32 s3, 0\ns_cbranch_scc1 L_a_nopoll")
    srd(e, 44, sDBG, 256)
    e("v_lshlrev_b32 v11, 2, v0")
    e("s_cmp_lt_u32 s5, 14\ns_cbranch_scc1 L_a_poll")
    e("s_lshl_b32 s60, s4, 1\ns_add_u32 s60, s60, s5\ns_sub_u32 s60, s60, 14\ns_lshl_b32 s60, s60, 2")
    e("v_mov_b32 v12, 1\ns_mov_b64 exec, 1")
    e("buffer_store_dword v12, v11, s[44:47], s60 offen sc1")
    e("s_mov_b64 exec, -1")
    e("L_a_poll:")
    e("s_and_b32 s60, s6, 30\ns_lshr_b32 s61, s7, 2\ns_add_u32 s60, s60, s61\ns_lshl_b32 s60, 1, s60\ns_or_b32 s64, s60, 0x55555555")
    poll(e, 11, 44, "0", "s64")
    e("L_a_nopoll:")
    e("s_lshl_b32 s60, s6, 1\ns_and_b32 s61, s3, 1\ns_add_u32 s60, s60, s61\ns_lshl_b32 s60, s60, 5\ns_lshl_b32 s61, s7, 2\ns_add_u32 s60, s60, s61\ns_and_b32 s61, s3, 2\ns_add_u32 s60, s60, s61\ns_lshl_b32 s50, s60, 10")
    e(f"s_mul_i32 s61, s3, 3072\ns_mov_b32 m0, s61\ns_add_u32 s61, s61, {WS_K}")
    stamp(e, 3)
    e("s_barrier        ; F")
    stamp(e, 4)
    e("s_setprio 1")
    for q in range(3): e(f"buffer_load_dwordx4 v6, s[40:43], s61 offen offset:{q*1024} sc1 lds")
    e(f"buffer_load_dwordx4 {vr(QA,4)}, v6, s[40:43], s50 offen sc1")
    e(f"buffer_load_dwordx4 {vr(QB,4)}, v6, s[40:43], s50 offen offset:1024 sc1")
    e("v_and_b32 v10, 31, v0\nv_lshrrev_b32 v11, 5, v0\nv_lshlrev_b32 v11, 8, v11\nv_lshl_add_u32 v11, v10, 4, v11")
    e("v_cmp_gt_u32 vcc, 16, v10\nv_mov_b32 v12, 512\nv_mov_b32 v2, 0xdddddddd")
    e(f"v_cndmask_b32 v5, v12, v11, vcc\nv_add_u32 v5, {LV}, v5")
    e("s_mov_b32 s51, 0")
    e("s_waitcnt vmcnt(2)")
    e("s_barrier        ; C0")
    stamp(e, 5)
    e(f"ds_read_b128 {vr(KB[0],4)}, v6")
    e("s_waitcnt vmcnt(0) lgkmcnt(0)")
    e(f"{MFMA} {vr(SA,16)}, {vr(KB[0],4)}, {vr(QA,4)}, 0")
    e(f"{MFMA} {vr(SB,16)}, {vr(KB[0],4)}, {vr(QB,4)}, 0")
    e("s_nop 10")
    def maxtree(S, d, first):
        if first:
            e(f"v_max3_f32 v{d}, v{S}, v{S+1}, v{S+2}")
            for k in range(3, 15, 2): e(f"v_max3_f32 v{d}, v{d}, v{S+k}, v{S+k+1}")
            e(f"v_max_f32 v{d}, v{d}, v{S+15}")
        else:
            for k in range(0, 16, 2): e(f"v_max3_f32 v{d}, v{d}, v{S+k}, v{S+k+1}")
    maxtree(SA, 8, True); maxtree(SB, 9, True)
    e(f"s_mov_b32 s52, {f2h(-OFF)}")
    e("L_setmax:")
    e("v_mov_b32 v10, v8\nv_mov_b32 v11, v9\ns_nop 1\nv_permlane32_swap_b32 v8, v10\nv_permlane32_swap_b32 v9, v11\ns_nop 1")
    e("v_max_f32 v8, v8, v10\nv_max_f32 v9, v9, v11\nv_sub_f32 v8, s52, v8\nv_sub_f32 v9, s52, v9")
    e("v_mov_b32 v3, v6\nv_mov_b32 v4, v5")
    e(f"ds_read_b128 {vr(KB[0],4)}, v3")
    e(f"ds_read_b128 {vr(KB[1],4)}, v3 offset:1024")
    e(f"ds_read_b128 {vr(V1[0],4)}, v4")
    e(f"ds_read_b128 {vr(V2[0],4)}, v4 offset:{VG}")
    e(f"ds_read_b128 {vr(V1[1],4)}, v4 offset:{VT}")
    for k in range(16): e(f"v_mov_b32 v{CA+k}, v8")
    e("s_waitcnt lgkmcnt(0)\ns_nop 0")
    e(f"{MFMA} {vr(SA,16)}, {vr(KB[0],4)}, {vr(QA,4)}, {vr(CA,16)}")
    for k in range(16): e(f"v_mov_b32 v{CB+k}, v9")
    for k in range(16): e(f"v_mov_b32 v{OA+k}, 0\nv_mov_b32 v{OB+k}, 0")
    for k in range(8): e(f"v_mov_b32 v{SB+8+k}, 0")
    for k in range(4): e(f"v_mov_b32 v{V2[1]+k}, 0")
    n1 = 8 // U
    e(f"s_cmp_eq_u32 s51, 0\ns_cselect_b32 s53, {n1}, {64//U}")
    stamp(e, 6)
    e(".p2align 3")
    e("L_loop:")
    def ex(S, ks):
        for k in ks: e(f"v_exp_f32 v{S+k}, v{S+k}")
    for u in range(U):
        b = u & 1
        ex(SA, [0, 1])
        e(f"{SMF} {vr(OB,16)}, {vr(V2[b^1],4)}, {vr(SB+8,8)}, v2")
        e(f"ds_read_b128 {vr(V2[b^1],4)}, v4 offset:{(u+1)*VT + VG}")
        ex(SA, [2, 3, 4])
        e(f"{MFMA} {vr(SB,16)}, {vr(KB[b],4)}, {vr(QB,4)}, {vr(CB,16)}")
        e(f"ds_read_b128 {vr(KB[b],4)}, v3 offset:{(u+2)*1024}")
        ex(SA, [5, 6, 7, 8, 9])
        e(f"{SMF} {vr(OA,16)}, {vr(V1[b],4)}, {vr(SA,8)}, v2")
        e("s_waitcnt lgkmcnt(2)")
        if u == U-1: e("s_sub_u32 s53, s53, 1")
        ex(SA, range(10, 16))
        ex(SB, [0, 1])
        e(f"{SMF} {vr(OA,16)}, {vr(V2[b],4)}, {vr(SA+8,8)}, v2")
        if u == U-1: e("s_cmp_lg_u32 s53, 0")
        ex(SB, [2, 3, 4])
        e(f"{MFMA} {vr(SA,16)}, {vr(KB[b^1],4)}, {vr(QA,4)}, {vr(CA,16)}")
        ex(SB, [5, 6, 7, 8, 9])
        e(f"{SMF} {vr(OB,16)}, {vr(V1[b],4)}, {vr(SB,8)}, v2")
        e(f"ds_read_b128 {vr(V1[b],4)}, v4 offset:{(u+2)*VT}")
        if u == U-1:
            e(f"v_add_u32 v3, {U*1024}, v3\nv_add_u32 v4, {U*VT}, v4")
        ex(SB, range(10, 16))
    e("s_cbranch_scc1 L_loop")
    e("s_cmp_lg_u32 s51, 0\ns_cbranch_scc1 L_fin")
    e(f"s_mov_b32 s51, 1\ns_mov_b32 s53, {64//U - n1}\ns_barrier        ; C1\ns_branch L_loop")
    e("L_fin:")
    e(f"{SMF} {vr(OB,16)}, {vr(V2[1],4)}, {vr(SB+8,8)}, v2")
    stamp(e, 7)
    e(f"s_mov_b32 s54, {f2h(2.0**20)}")
    e("s_waitcnt lgkmcnt(0)")
    e("s_cmp_eq_u32 s51, 2\ns_cbranch_scc1 L_store0")
    e(f"v_mul_f32 v8, s54, v{OA+8}\nv_mul_f32 v8, 0, v8")
    for k in range(8): e(f"v_fma_f32 v8, v{OA+k}, 0, v8")
    e(f"v_mul_f32 v9, s54, v{OB+8}\nv_fma_f32 v8, v9, 0, v8")
    for k in range(8): e(f"v_fma_f32 v8, v{OB+k}, 0, v8")
    e("v_cmp_u_f32 vcc, v8, v8\ns_nop 4\ns_cbranch_vccnz L_fallback")
    e("L_store:")
    e(f"v_rcp_f32 v8, v{OA+8}\nv_rcp_f32 v10, v{OB+8}")
    e(f"s_add_u32 s60, s50, {WS_O}")
    for k in range(8): e(f"v_mul_f32 v{OA+k}, v8, v{OA+k}")
    for k in range(4): e(f"v_cvt_pk_bf16_f32 v{SA+k}, v{OA+2*k}, v{OA+2*k+1}")
    e(f"buffer_store_dwordx4 {vr(SA,4)}, v6, s[40:43], s60 offen sc1")
    for k in range(8): e(f"v_mul_f32 v{OB+k}, v10, v{OB+k}")
    for k in range(4): e(f"v_cvt_pk_bf16_f32 v{SA+4+k}, v{OB+2*k}, v{OB+2*k+1}")
    e(f"buffer_store_dwordx4 {vr(SA+4,4)}, v6, s[40:43], s60 offen offset:1024 sc1")
    e("s_barrier        ; D")
    stamp(e, 8)
    XR, GT = 144, 152
    srd(e, 44, sOUT, 2097152)
    e("s_lshl_b32 s60, s3, 6\nv_add_u32 v9, s60, v0")
    e("v_lshrrev_b32 v10, 3, v9\nv_and_b32 v11, 7, v9\nv_lshlrev_b32 v7, 10, v10\nv_lshl_add_u32 v7, v11, 4, v7")
    e("s_lshl_b32 s55, s6, 16\ns_lshl_b32 s60, s7, 7\ns_add_u32 s55, s55, s60\ns_add_u32 s56, s55, 32768")
    e(f"buffer_load_dwordx4 {vr(XR,4)}, v7, s[32:35], s55 offen")
    e(f"buffer_load_dwordx4 {vr(XR+4,4)}, v7, s[32:35], s56 offen")
    e("v_lshlrev_b32 v11, 1, v11\nv_and_b32 v12, 7, v10\nv_xor_b32 v11, v11, v12\nv_lshlrev_b32 v11, 4, v11\nv_lshl_add_u32 v10, v10, 8, v11\nv_xor_b32 v11, 16, v10")
    e(f"s_lshl_b32 s60, s6, 7\ns_lshl_b32 s61, s7, 4\ns_add_u32 s60, s60, s61\ns_lshl_b32 s61, s3, 2\ns_add_u32 s60, s60, s61\ns_add_u32 s60, s60, {WS_FO}")
    e("v_mov_b32 v12, 1\nv_mov_b32 v13, 0")
    e("s_barrier        ; R1")
    def reduce(dst, tmp, issue_only=False):
        for tt in range(2):
            for w in range(4):
                d = dst + tt*8 if w == 0 else tmp + tt*24 + (w-1)*8
                e(f"ds_read_b128 {vr(d,4)}, v10 offset:{w*16384 + tt*8192}")
                e(f"ds_read_b128 {vr(d+4,4)}, v11 offset:{w*16384 + tt*8192}")
    def reduce_sum(dst, tmp):
        for tt in range(2):
            e(f"s_waitcnt lgkmcnt({8 if tt == 0 else 0})")
            d = dst + tt*8; t = tmp + tt*24
            for k in range(4): e(f"v_pk_add_f32 {vr(d+2*k,2)}, {vr(d+2*k,2)}, {vr(t+2*k,2)}")
            for k in range(4): e(f"v_pk_add_f32 {vr(t+8+2*k,2)}, {vr(t+8+2*k,2)}, {vr(t+16+2*k,2)}")
            for k in range(4): e(f"v_pk_add_f32 {vr(d+2*k,2)}, {vr(d+2*k,2)}, {vr(t+8+2*k,2)}")
    reduce(GT, 16)
    e("s_waitcnt vmcnt(0)")
    e("s_mov_b64 exec, 1")
    e("buffer_store_dword v12, v13, s[40:43], s60 offen sc1")
    e("s_mov_b64 exec, -1")
    stamp(e, 9)
    reduce_sum(GT, 16)
    e(f"s_mov_b32 s60, {f2h(-math.log2(math.e))}")
    for k in range(16): e(f"v_mul_f32 v{16+k}, s60, v{GT+k}")
    for k in range(16): e(f"v_exp_f32 v{16+k}, v{16+k}")
    for k in range(16): e(f"v_add_f32 v{16+k}, 1.0, v{16+k}")
    for k in range(16): e(f"v_rcp_f32 v{16+k}, v{16+k}")
    for k in range(16): e(f"v_mul_f32 v{GT+k}, v{GT+k}, v{16+k}")
    e("v_add_u32 v10, 65536, v10\nv_add_u32 v11, 65536, v11")
    e("s_mov_b32 s59, 0xffff0000")
    XF = 96
    for k in range(8):
        e(f"v_lshlrev_b32 v{XF+2*k}, 16, v{XR+k}\nv_and_b32 v{XF+1+2*k}, s59, v{XR+k}")
    stamp(e, 10)
    e("s_barrier        ; R2")
    stamp(e, 11)
    reduce(64, 16)
    reduce_sum(64, 16)
    for tt in range(2):
        for k in range(8): e(f"v_fmac_f32 v{XF+tt*8+k}, v{64+tt*8+k}, v{GT+tt*8+k}")
        for k in range(4): e(f"v_cvt_pk_bf16_f32 v{80+tt*4+k}, v{XF+tt*8+2*k}, v{XF+tt*8+2*k+1}")
        e(f"buffer_store_dwordx4 {vr(80+tt*4,4)}, v7, s[44:47], s{55+tt} offen")
    e("s_branch L_end")
    e("L_store0:")
    e("s_nop 7\ns_branch L_store")
    e("L_fallback:")
    e("s_mov_b32 s51, 2\ns_mov_b32 s52, 0\ns_mov_b32 s53, 64\nv_mov_b32 v3, v6\nv_mov_b32 v8, 0xff800000\nv_mov_b32 v9, 0xff800000")
    e("L_mx:")
    e(f"ds_read_b128 {vr(KB[0],4)}, v3\nv_add_u32 v3, 1024, v3\ns_waitcnt lgkmcnt(0)")
    e(f"{MFMA} {vr(SA,16)}, {vr(KB[0],4)}, {vr(QA,4)}, 0")
    e(f"{MFMA} {vr(SB,16)}, {vr(KB[0],4)}, {vr(QB,4)}, 0")
    e("s_nop 11")
    maxtree(SA, 8, False); maxtree(SB, 9, False)
    e("s_sub_u32 s53, s53, 1\ns_cmp_lg_u32 s53, 0\ns_cbranch_scc1 L_mx")
    e("s_branch L_setmax")

def phase2_g(e, cfg):
    NCH = (65536 + 128*VG + 1023) // 1024
    e("s_setprio 0")
    e("v_lshlrev_b32 v6, 4, v0")
    GSZ = (163840 - LG) // 4 // 512 * 512
    e(f"s_mul_i32 s49, s48, {GSZ}\ns_add_u32 s49, s49, {LG}")
    g_addr(e, 49)
    srd(e, 36, sWD, 1835008)
    e(f"s_mul_i32 s60, s6, 224\ns_mul_i32 s61, s48, 28\ns_add_u32 s60, s60, s61\ns_lshl_b32 s60, s60, 10\ns_add_u32 s60, s60, {WS_H}")
    e(f"v_add_u32 v7, s60, v6\nv_add_u32 v8, {112*1024}, v7")
    e(f"s_mul_i32 s56, s48, {28*16*1024}\ns_mov_b32 s57, 0")
    nv = -(-(NCH - 76) // 4)
    e("s_mul_i32 s64, s48, 13\ns_add_u32 s64, s64, 12\ns_lshl_b32 s64, s64, 10")
    e(f"s_mul_i32 s65, s48, {nv}\ns_min_u32 s65, s65, {NCH - 76 - nv}\ns_add_u32 s65, s65, 76\ns_lshl_b32 s65, s65, 10")
    e(f"s_mul_i32 s61, s48, 3072\ns_add_u32 s61, s61, {LV}\ns_mov_b32 m0, s61\ns_add_u32 s61, s61, {WS_K}")
    e("s_barrier        ; F")
    stamp(e, 4)
    for q in range(3): e(f"buffer_load_dwordx4 v6, s[40:43], s61 offen offset:{q*1024} sc1 lds")
    nrest = 0
    def kvrest(grp):
        nonlocal nrest
        for (sreg, n) in ((64, 13), (65, nv)):
            e(f"s_mov_b32 m0, s{sreg}\ns_add_u32 s61, s{sreg}, {WS_K}")
            for q in range(4):
                if grp*4 + q < n:
                    e(f"buffer_load_dwordx4 v6, s[40:43], s61 offen offset:{q*1024} sc1 lds"); nrest += 1
            if grp < 3: e(f"s_add_u32 s{sreg}, s{sreg}, 4096")
    e("s_waitcnt vmcnt(0)\ns_barrier        ; C0")
    stamp(e, 5)
    e("s_cmp_ge_u32 s5, 14\ns_cbranch_scc1 L_g_nopub")
    e(f"s_lshl_b32 s60, s4, 8\ns_lshl_b32 s61, s5, 4\ns_add_u32 s60, s60, s61\ns_lshl_b32 s61, s48, 2\ns_add_u32 s60, s60, s61\ns_add_u32 s60, s60, {WS_FH}")
    e("v_mov_b32 v12, 1\nv_mov_b32 v13, 0\ns_mov_b64 exec, 1")
    e("buffer_store_dword v12, v13, s[40:43], s60 offen sc1")
    e("s_mov_b64 exec, -1")
    e("L_g_nopub:")
    for grp in range(4): kvrest(grp)
    e(f"s_lshr_b32 s60, s6, 1\ns_lshl_b32 s60, s60, 8\ns_mul_i32 s61, s48, 56\ns_add_u32 s60, s60, s61\ns_add_u32 s66, s60, {WS_FH}")
    e("v_and_b32 v11, 15, v0\nv_lshlrev_b32 v11, 2, v11")
    e("s_waitcnt vmcnt(0)")
    stamp(e, 6)
    e("s_barrier        ; C1")
    poll(e, 11, 40, "s66", "0x3fff")
    stamp(e, 7)
    GACC, WST, HST, AF = 16, 80, 144, 208
    def gloads(st):
        b = st & 1
        for k in range(4):
            for q in range(2):
                e(f"buffer_load_dwordx4 {vr(WST+b*32+k*8+q*4,4)}, v2, s[36:39], s56 offen")
                e("s_add_u32 s56, s56, 8192")
            for tt in range(2):
                e(f"buffer_load_dwordx4 {vr(HST+b*32+k*8+tt*4,4)}, v{7+tt}, s[40:43], s57 offen offset:{k*1024} sc1")
        e("s_add_u32 s57, s57, 4096")
    def woloads(half):
        b = half ^ 1
        for k in range(4):
            for q in range(2):
                e(f"buffer_load_dwordx4 {vr(WST+b*32+k*8+q*4,4)}, v2, s[44:47], s58 offen")
                e("s_add_u32 s58, s58, 8192")
    gloads(0); gloads(1)
    srd(e, 44, sWO, 524288)
    e("s_lshl_b32 s58, s48, 17")
    for st in range(7):
        b = st & 1
        for kp in range(2):
            rem = (16 if st < 6 else 8) + (8 if kp == 0 else 0)
            e(f"s_waitcnt vmcnt({rem})")
            for k2_ in range(2):
                for q in range(2):
                    e(f"ds_write_b128 v3, {vr(WST+b*32+(kp*2+k2_)*8+q*4,4)} offset:{k2_*2048+q*1024}")
            for k2_ in range(2):
                for mt in range(2):
                    for tp in range(2):
                        e(f"ds_read_b64_tr_b16 {vr(AF+k2_*8+mt*4+tp*2,2)}, v{4+mt} offset:{k2_*2048+tp*1024}")
            e("s_waitcnt lgkmcnt(0)")
            for k2_ in range(2):
                for tt in range(2):
                    for mt in range(2):
                        a = GACC + (tt*2+mt)*16
                        cc = "0" if (st == 0 and kp == 0 and k2_ == 0) else vr(a,16)
                        e(f"{MFMA} {vr(a,16)}, {vr(AF+k2_*8+mt*4,4)}, {vr(HST+b*32+(kp*2+k2_)*8+tt*4,4)}, {cc}")
        if st + 2 < 7: gloads(st + 2)
        elif st == 5: woloads(0)
        else: woloads(1)
    def wo(k): return WST + ((k >> 2) ^ 1)*32 + (k & 3)*8
    for kp in range(4):
        e(f"s_waitcnt vmcnt({12 - 4*kp})")
        for k2_ in range(2):
            for q in range(2):
                e(f"ds_write_b128 v3, {vr(wo(2*kp+k2_)+q*4,4)} offset:{k2_*2048+q*1024}")
        for k2_ in range(2):
            for mt in range(2):
                for tp in range(2):
                    e(f"ds_read_b64_tr_b16 {vr(wo(2*kp+k2_)+mt*4+tp*2,2)}, v{4+mt} offset:{k2_*2048+tp*1024}")
        e("s_waitcnt lgkmcnt(0)")
    e("v_and_b32 v10, 31, v0\nv_lshrrev_b32 v11, 5, v0\nv_and_b32 v12, 7, v0\nv_xor_b32 v12, v12, v11\nv_lshlrev_b32 v12, 4, v12")
    e("s_lshl_b32 s60, s48, 14")
    e("v_lshl_add_u32 v12, v10, 8, v12\nv_add_u32 v12, s60, v12\nv_xor_b32 v13, 32, v12\nv_xor_b32 v14, 64, v12\nv_xor_b32 v15, 96, v12")
    e(f"s_lshl_b32 s60, s6, 6\ns_lshl_b32 s61, s48, 3\ns_add_u32 s60, s60, s61\ns_lshl_b32 s60, s60, 10\ns_add_u32 s60, s60, {WS_O}")
    e("v_add_u32 v7, s60, v6\nv_add_u32 v8, 32768, v7\ns_mov_b32 s57, 0\ns_mov_b32 s58, 4096")
    e(f"s_lshl_b32 s60, s6, 7\ns_lshl_b32 s61, s48, 5\ns_add_u32 s60, s60, s61\ns_add_u32 s66, s60, {WS_FO}")
    e("v_and_b32 v11, 7, v0\nv_lshlrev_b32 v11, 2, v11")
    def wpart():
        for tt in range(2):
            for mt in range(2):
                for q in range(4):
                    e(f"ds_write_b128 v{12+q}, {vr(GACC+(tt*2+mt)*16+4*q,4)} offset:{tt*8192 + mt*128}")
    stamp(e, 8)
    e("s_barrier        ; D")
    wpart()
    e("s_waitcnt lgkmcnt(0)\ns_barrier        ; R1")
    e("s_setprio 2")
    for q in range(4): e(f"v_add_u32 v{12+q}, 65536, v{12+q}")
    poll(e, 11, 40, "s66", "0xff")
    stamp(e, 9)
    for k in range(8):
        for tt in range(2):
            e(f"buffer_load_dwordx4 {vr(HST+k*8+tt*4,4)}, v{7+tt}, s[40:43], s{57+(k>>2)} offen offset:{(k&3)*1024} sc1")
    for k in range(8):
        e(f"s_waitcnt vmcnt({14 - 2*k})")
        for tt in range(2):
            for mt in range(2):
                a = GACC + (tt*2+mt)*16
                cc = "0" if k == 0 else vr(a,16)
                e(f"{MFMA} {vr(a,16)}, {vr(wo(k)+mt*4,4)}, {vr(HST+k*8+tt*4,4)}, {cc}")
    stamp(e, 10)
    e("s_nop 8")
    wpart()
    e("s_waitcnt lgkmcnt(0)\ns_barrier        ; R2")

def build(cfg):
    global STAMP
    STAMP = cfg.get("stamp", 0)
    e = Asm()
    hdr = open("cdna_kernels/" + NAME + ".s.ref").read().split("; Override launch")[0]
    kn = NAME + "_kernel"
    out = hdr
    if cfg.get("list"):
        out += f"; @launch kernel={kn} grid=(256,1,1) block=(512,1,1) lds=163840\n"
    else:
        out += "; @launch grid=(256,1,1) block=(512,1,1) lds=163840\n"
    out += '.amdgcn_target "amdgcn-amd-amdhsa--gfx950"\n.text\n'
    e(f".globl {kn}\n.p2align 8\n.type {kn},@function\n{kn}:")
    e("s_cmp_ge_u32 s2, 256\ns_cbranch_scc1 L_done")
    e("s_load_dwordx8 s[8:15], s[0:1], 0\ns_load_dwordx16 s[16:31], s[0:1], 32")
    e("v_lshrrev_b32 v1, 6, v0\nv_and_b32 v0, 63, v0\nv_readfirstlane_b32 s3, v1")
    if STAMP:
        for k in range(20): e(f"s_mov_b32 s{80+k}, 0")
        stamp(e, 0)
    e("s_and_b32 s60, s2, 7\ns_lshr_b32 s61, s2, 3")
    e("s_and_b32 s4, s60, 1\ns_lshl_b32 s4, s4, 3\ns_and_b32 s62, s61, 7\ns_add_u32 s4, s4, s62")
    e("s_lshr_b32 s5, s60, 1\ns_lshl_b32 s5, s5, 2\ns_lshr_b32 s62, s61, 3\ns_add_u32 s5, s5, s62")
    e("s_lshl_b32 s6, s60, 2\ns_add_u32 s6, s6, s62\ns_and_b32 s7, s61, 7")
    e("s_cmp_ge_u32 s3, 4\ns_cbranch_scc1 L_compute")
    p1_helper(e, cfg)
    phase2_a(e, cfg)
    e("L_compute:")
    e("s_setprio 1\ns_sub_u32 s48, s3, 4")
    p1_compute(e, cfg)
    phase2_g(e, cfg)
    e("L_end:")
    endpgm(e)
    e("L_done:")
    e("s_endpgm")
    out += e.text()
    out += '.section .rodata,"a"\n' + kd(kn, 256, 102)
    return out

if __name__ == "__main__":
    cfg = {}
    dst = sys.argv[1] if len(sys.argv) > 1 else "cdna_kernels/" + NAME + ".s"
    for a in sys.argv[2:]:
        k, v = a.split("="); cfg[k] = int(v) if v.isdigit() else v
    open(dst, "w").write(build(cfg))
    print("wrote", dst)
```

```python
import sys, math
from asmlib import *

NAME = "recurrent_scan__grouped_kv_mqa__glu_gated_geglu__prompt"
WS_Q, WS_O, WS_KV, WS_H = 0, 0x200000, 0x400000, 0x500000
WS_F = 0x480000
WS_FKV, WS_FQ = 0x490000, 0x492000
sN = 4
WS_SIZE = 0x10000000
VG = 544; KT = 1024 + 2*VG
NCH = 64*KT // 1024
QSCALE = 0.25 * math.log2(math.e)
sX, sWQ, sWK, sWV, sWO, sWG, sWU, sWD, sOUT, sDBG, sWS = 8, 10, 12, 14, 16, 20, 22, 24, 26, 28, 30
MFMA = "v_mfma_f32_32x32x16_bf16"
SMF = "v_smfmac_f32_32x32x32_bf16"
STAMP = 0
WS_T = 0xF000000
SPIN = 1 << 17
NST = 16
XN = 0; WR = 65536; NSLOT = 5
MISC = WR + NSLOT*16384
CNT = 163840 - 16
LG = 64*KT
NEARLY = 10

KS = []
def stamp(e, idx, force=False):
    if KS and 4 <= idx <= 11 and not force: return
    if STAMP:
        e(f"{'s_memtime' if STAMP==2 else 's_memrealtime'} s[100:101]")
        e("s_waitcnt lgkmcnt(0)")
        e(f"s_mov_b32 s{80+idx}, s100")
def endpgm(e):
    if STAMP:
        stamp(e, 14)
        e("s_waitcnt vmcnt(0)")
        stamp(e, 15)
        e(f"s_lshl_b32 s60, s2, 9\ns_lshl_b32 s61, s3, 6\ns_add_u32 s60, s60, s61\ns_add_u32 s60, s60, {WS_T}")
        e("v_mov_b32 v1, 0")
        for k in range(NST):
            e(f"v_mov_b32 v2, s{80+k}\nbuffer_store_dword v2, v1, s[40:43], s60 offen offset:{4*k}\ns_nop 1")
    e("s_endpgm")

def poll(e, vaddr, soff, tmp=10, sleep=0, wide=False):
    L = e.new("poll"); D = e.new("polled")
    e(f"s_mov_b32 s62, {SPIN}")
    e(f"{L}:")
    if wide:
        e(f"buffer_load_dwordx4 v[{tmp}:{tmp+3}], v{vaddr}, s[40:43], {soff} offen sc1")
        e("s_waitcnt vmcnt(0)")
        chk2(e, tmp)
    else:
        e(f"buffer_load_dword v{tmp}, v{vaddr}, s[40:43], {soff} offen sc1")
        e("s_waitcnt vmcnt(0)")
        e(f"v_cmp_ne_u32 vcc, s{sN}, v{tmp}")
    e("s_sub_u32 s62, s62, 1\ns_cmp_lg_u32 s62, 0\ns_nop 2")
    e(f"s_cbranch_vccz {D}")
    if sleep: e(f"s_sleep {sleep}")
    e(f"s_cbranch_scc1 {L}")
    e(f"{D}:")
def chk2(e, tmp):
    for k in range(4): e(f"v_xor_b32 v{tmp+k}, s{sN}, v{tmp+k}")
    e(f"v_or3_b32 v{tmp}, v{tmp}, v{tmp+1}, v{tmp+2}\nv_or_b32 v{tmp}, v{tmp}, v{tmp+3}\nv_cmp_ne_u32 vcc, 0, v{tmp}")
OOL = []
def nonce_take(e, vn, vz, srdp):
    L = e.new("nspin"); D = e.new("ngot"); L2 = e.new("nloop")
    OOL.append(f"""{L}:
s_mov_b32 s62, {SPIN}
{L2}:
buffer_load_dword v{vn}, v{vz}, s[{srdp}:{srdp+3}], 0 offen sc1
s_waitcnt vmcnt(0)
v_readfirstlane_b32 s{sN}, v{vn}
s_sub_u32 s62, s62, 1
s_nop 3
s_cmp_lg_u32 s{sN}, 0
s_cbranch_scc1 {D}
s_sleep 2
s_cmp_lg_u32 s62, 0
s_cbranch_scc1 {L2}
s_branch {D}""")
    return f"v_readfirstlane_b32 s{sN}, v{vn}\ns_nop 3\ns_cmp_eq_u32 s{sN}, 0\ns_cbranch_scc1 {L}\n{D}:"
def flag_set(vd, vz, soff, wait=""):
    return f"v_mov_b32 v{vd}, s{sN}\nv_mov_b32 v{vz}, 0\ns_mov_b64 exec, 1\n{wait}\nbuffer_store_dword v{vd}, v{vz}, s[40:43], {soff} offen sc1\ns_mov_b64 exec, -1"

def lds_arrive(e, off, val, va=14, vv=15):
    e(f"v_mov_b32 v{va}, {CNT}\nv_mov_b32 v{vv}, {val}\ns_mov_b64 exec, 1")
    e(f"ds_add_u32 v{va}, v{vv} offset:{off}")
    e("s_mov_b64 exec, -1")
def lds_wait(e, off, mask, val, va=14, vv=15, ge=False):
    L = e.new("lw"); D = e.new("lwd")
    e(f"v_mov_b32 v{va}, {CNT}\ns_mov_b32 s62, {SPIN*8}")
    e(f"{L}:")
    e(f"ds_read_b32 v{vv}, v{va} offset:{off}\ns_waitcnt lgkmcnt(0)")
    e(f"v_readfirstlane_b32 s63, v{vv}\ns_sub_u32 s62, s62, 1\ns_nop 2")
    e(f"s_and_b32 s63, s63, {mask}\ns_cmp_{'ge' if ge else 'eq'}_u32 s63, {val}\ns_cbranch_scc1 {D}")
    if ge: e("s_sleep 2")
    e(f"s_cmp_lg_u32 s62, 0\ns_cbranch_scc1 {L}")
    e(f"{D}:")


X = 64
def startup_loads(e):
    e("v_lshrrev_b32 v1, 3, v0\nv_and_b32 v2, 7, v0")
    e("s_lshl_b32 s60, s6, 6\ns_lshl_b32 s61, s3, 3\ns_add_u32 s60, s60, s61")
    e("v_add_u32 v3, s60, v1\nv_lshlrev_b32 v3, 10, v3\nv_lshl_add_u32 v3, v2, 4, v3")
    e("s_lshl_b32 s61, s78, 8")
    for c in range(8):
        e(f"s_add_u32 s60, s61, {c*128}\ns_and_b32 s{64+c}, s60, 0x380")
    e("s_waitcnt lgkmcnt(0)")
    srd(e, 32, sX, 2097152)
    for c in range(8):
        e(f"buffer_load_dwordx4 {vr(X+4*c,4)}, v3, s[32:35], s{64+c} offen")
    srd(e, 40, sWS, WS_SIZE)

def startup_norm(e, extra, nextra_before):
    e("s_and_b32 s60, s3, 1\ns_lshl_b32 s60, s60, 2\ns_lshl_b32 s61, s3, 10")
    e("v_lshrrev_b32 v5, 1, v1\nv_or_b32 v5, s60, v5\nv_xor_b32 v5, v5, v2\nv_lshlrev_b32 v5, 4, v5\nv_lshl_add_u32 v5, v1, 7, v5\nv_add_u32 v5, s61, v5")
    e("s_lshl_b32 s61, s6, 7")
    for c in range(8):
        e(f"s_sub_u32 s60, s{64+c}, s61\ns_and_b32 s60, s60, 0x380\ns_lshl_b32 s60, s60, 6\nv_add_u32 v{40+c}, s60, v5")
    e("s_mov_b32 s59, 0xffff0000\ns_mov_b32 s75, 0x3f803f80")
    e(f"s_mov_b32 s76, {f2h(1/512)}\ns_mov_b32 s77, {f2h(1e-5)}")
    e("v_mov_b32 v8, 0\nv_mov_b32 v9, 0")
    issued = 8 + nextra_before
    def pop():
        nonlocal issued
        if extra:
            extra.pop(0)(); issued += 1
    for c in range(8):
        e(f"s_waitcnt vmcnt({issued - c - 1})")
        if c == 0: stamp(e, 12)
        for k in range(4):
            e(f"v_dot2c_f32_bf16 v8, s75, v{X+4*c+k}")
            e(f"v_dot2c_f32_bf16 v9, v{X+4*c+k}, v{X+4*c+k}")
        if c >= 4: pop()
    e("s_nop 2")
    for dpp in ("quad_perm:[1,0,3,2]", "quad_perm:[2,3,0,1]", "row_half_mirror"):
        e(f"v_add_f32_dpp v8, v8, v8 {dpp} row_mask:0xf bank_mask:0xf")
        e(f"v_add_f32_dpp v9, v9, v9 {dpp} row_mask:0xf bank_mask:0xf")
        e("s_nop 0")
    e("v_mul_f32 v8, s76, v8\nv_mul_f32 v10, v8, v8\nv_fma_f32 v10, v9, s76, -v10\nv_max_f32 v10, 0, v10\nv_add_f32 v10, s77, v10")
    e("v_rsq_f32 v16, v10\ns_nop 0\nv_mul_f32 v18, v8, v16\nv_mov_b32 v17, v16\nv_sub_f32 v18, 0, v18\nv_mov_b32 v19, v18")
    for c in range(8):
        b = X + 4*c
        for k in range(4): e(f"v_lshlrev_b32 v{32+2*k}, 16, v{b+k}\nv_and_b32 v{33+2*k}, s59, v{b+k}")
        pop()
        for k in range(4): e(f"v_pk_fma_f32 v[{32+2*k}:{33+2*k}], v[{32+2*k}:{33+2*k}], v[16:17], v[18:19]")
        for k in range(4): e(f"v_cvt_pk_bf16_f32 v{b+k}, v{32+2*k}, v{33+2*k}")
        e(f"ds_write_b128 v{40+c}, {vr(b,4)}")
        pop()
    while extra: pop()

AREG = (16, 32, 48, 64, 80, 96, 112, 116)
KB = [120, 124]; V1 = [128, 132]; V2 = [136, 140]
def early(e, q0, q1):
    for q in range(q0, q1):
        if q % 4 == 0:
            e(f"s_mov_b32 m0, s64\ns_add_u32 s61, s64, {WS_KV}")
        e(f"buffer_load_dwordx4 v6, s[40:43], s61 offen offset:{(q&3)*1024} sc1 lds")
        if q % 4 == 3: e("s_add_u32 s64, s64, 4096")

def p1_helper(e, cfg):
    PRE = cfg.get("pre", 4)
    e(f"s_setprio {cfg.get('hprio0', 1)}")
    e("s_lshr_b32 s62, s3, 1       ; mat\ns_and_b32 s63, s3, 1")
    e("s_cmp_eq_u32 s62, 0")
    e(f"s_cselect_b32 s44, s{sWG}, s{sWU}\ns_cselect_b32 s45, s{sWG+1}, s{sWU+1}\ns_mov_b32 s46, 1835008\ns_mov_b32 s47, 0x00020000")
    e("s_mov_b32 s73, 1792")
    e("s_lshl_b32 s60, s62, 2")
    e("v_and_b32 v4, 2, v1\nv_or_b32 v4, s60, v4\nv_xor_b32 v4, v4, v2\nv_lshlrev_b32 v4, 4, v4")
    e("s_mul_i32 s60, s5, 7\ns_add_u32 s60, s60, s63\ns_lshl_b32 s61, s79, 2\ns_add_u32 s61, s61, s60\ns_add_u32 s61, s61, 1      ; H1")
    e("s_lshl_b32 s61, s61, 7\nv_mul_u32_u24 v6, 3584, v1\nv_add3_u32 v52, v6, v4, s61")
    for q in range(1, 4): e(f"v_add_u32 v{52+q}, {q*(8*3584-1024)}, v52")
    e("s_cmp_gt_u32 s63, s79\ns_cbranch_scc1 L_hq")
    e("s_mov_b32 s36, s44\ns_mov_b32 s37, s45\ns_mov_b32 s38, 1835008\ns_mov_b32 s72, 1792")
    e("s_add_u32 s60, s79, 1\ns_lshl_b32 s60, s60, 7")
    for q in range(4): e(f"v_subrev_u32 v{48+q}, s60, v{52+q}")
    e("s_branch L_hw")
    e("L_hq:")
    e(f"s_mov_b32 s36, s{sWQ}\ns_mov_b32 s37, s{sWQ+1}\ns_mov_b32 s38, 524288\ns_mov_b32 s72, 512")
    e("s_lshl_b32 s60, s5, 8\ns_lshl_b32 s61, s62, 7\ns_add_u32 s60, s60, s61")
    e("v_lshlrev_b32 v6, 10, v1\nv_add3_u32 v48, v6, v4, s60")
    for q in range(1, 4): e(f"v_add_u32 v{48+q}, {q*(8*1024-1024)}, v48")
    e("L_hw:")
    e("s_mov_b32 s39, 0x00020000")
    e(f"s_lshl_b32 s58, s3, 12\ns_add_u32 s58, s58, {WR}")
    e("s_lshl_b32 s57, s6, 7\ns_and_b32 s57, s57, 0x380")
    def wdma1(st, q):
        p = st >> 4
        if q == 0:
            e(f"s_add_u32 m0, s58, {(st % NSLOT)*16384}")
            e(f"s_mul_i32 s56, s57, s{72+p}")
        e(f"buffer_load_dwordx4 v{48+4*p+q}, s[{36+8*p}:{39+8*p}], s56 offen offset:{q*1024} lds")
        if q == 3:
            e("s_add_u32 s57, s57, 64\ns_and_b32 s57, s57, 0x3c0")
    extra = [(lambda st=st, q=q: wdma1(st, q)) for st in range(PRE) for q in range(4)]
    startup_norm(e, extra, 0)
    stamp(e, 1)
    e(f"s_setprio {cfg.get('hprio1', 0)}")
    def interval_head(T, nxt, extra_out=0):
        e(f"s_waitcnt vmcnt({4*(nxt - T - 1) + extra_out})")
        e("s_barrier")
    SA, SB, CA, CB, OA, OB, QA, QB = AREG
    nxt = PRE
    setup = [f"s_mov_b32 s68, s{sDBG}", f"s_mov_b32 s69, s{sDBG+1}", "s_mov_b32 s70, 256", "s_mov_b32 s71, 0x00020000",
             "v_mov_b32 v7, 0", "v_lshlrev_b32 v6, 4, v0", "v_lshrrev_b32 v12, 1, v0", "v_and_b32 v13, 1, v0", "v_lshlrev_b32 v12, 7, v12", "v_lshl_add_u32 v12, v13, 4, v12"]
    setup += "s_lshl_b32 s50, s6, 1\ns_and_b32 s61, s3, 1\ns_add_u32 s50, s50, s61\ns_lshl_b32 s50, s50, 5\ns_lshl_b32 s61, s7, 2\ns_add_u32 s50, s50, s61\ns_and_b32 s61, s3, 2\ns_add_u32 s50, s50, s61\ns_lshl_b32 s50, s50, 10".split("\n")
    setup += [f"s_mul_i32 s64, s3, {NEARLY*1024}", f"s_mov_b32 s66, {WS_FKV}", f"s_mov_b32 s67, {WS_KV}"]
    setup += f"s_lshl_b32 s65, s6, 7\ns_and_b32 s60, s7, 6\ns_lshr_b32 s61, s3, 1\ns_add_u32 s60, s60, s61\ns_lshl_b32 s60, s60, 2\ns_add_u32 s65, s65, s60\ns_add_u32 s65, s65, {WS_FQ}".split("\n")
    setup += ["v_and_b32 v8, 31, v0", "v_lshrrev_b32 v14, 5, v0", "v_lshlrev_b32 v14, 8, v14", "v_lshl_add_u32 v14, v8, 4, v14",
              "v_and_b32 v15, 27, v8", "v_cmp_eq_u32 vcc, 16, v15", "v_mov_b32 v15, 528", "v_mov_b32 v13, 512", "v_cndmask_b32 v15, v15, v13, vcc",
              "v_cmp_gt_u32 vcc, 16, v8", "v_mov_b32 v2, 0xdddddddd", "s_mov_b32 s51, 0", "v_cndmask_b32 v5, v15, v14, vcc", "v_add_u32 v5, 1024, v5"]
    setup += [f"v_mov_b32 v{OA+k}, 0" for k in range(32)]
    e("s_waitcnt lgkmcnt(0)")
    for T in range(28):
        interval_head(T, nxt)
        cnt = 0
        while nxt < min(32, T + NSLOT) and cnt < 2:
            for q in range(4):
                wdma1(nxt, q)
                if T >= 2 and q < 3:
                    for _ in range(2):
                        if setup: e(setup.pop(0))
            nxt += 1; cnt += 1
    assert not setup and nxt == 32
    e("buffer_load_dword v9, v7, s[68:71], 0 offen sc1")
    e("buffer_load_dwordx4 v[16:19], v12, s[40:43], s66 offen sc1")
    interval_head(28, 32, 2)
    e("buffer_load_dword v10, v7, s[40:43], s65 offen sc1")
    for T in range(29, 31): interval_head(T, 32, 3)
    e("s_waitcnt vmcnt(0)")
    e(nonce_take(e, 9, 7, 68))
    chk2(e, 16)
    e("s_mov_b32 s53, 1\ns_nop 3\ns_cbranch_vccz L_hkvok")
    e("s_barrier        ; B31")
    poll(e, 12, "s66", tmp=16, sleep=4, wide=True)
    e("s_mov_b32 s53, 0")
    e("L_hkvok:")
    e(f"v_cmp_ne_u32 vcc, s{sN}, v10")
    e(f"buffer_load_dwordx4 {vr(KB[0],4)}, v6, s[40:43], s67 offen sc1")
    e("s_nop 2\ns_cbranch_vccnz L_hqlate")
    e(f"buffer_load_dwordx4 {vr(QA,4)}, v6, s[40:43], s50 offen sc1")
    e(f"buffer_load_dwordx4 {vr(QB,4)}, v6, s[40:43], s50 offen offset:1024 sc1")
    e("s_cmp_eq_u32 s53, 0\ns_cbranch_scc1 L_hq1\ns_barrier        ; B31\nL_hq1:")
    early(e, 0, NEARLY)
    e(f"s_waitcnt vmcnt({NEARLY})\ns_branch L_hend")
    e("L_hqlate:")
    e("s_cmp_eq_u32 s53, 0\ns_cbranch_scc1 L_hq2\ns_barrier        ; B31\nL_hq2:")
    early(e, 0, NEARLY)
    poll(e, 7, "s65", sleep=1)
    stamp(e, 3)
    e(f"buffer_load_dwordx4 {vr(QA,4)}, v6, s[40:43], s50 offen sc1")
    e(f"buffer_load_dwordx4 {vr(QB,4)}, v6, s[40:43], s50 offen offset:1024 sc1")
    e("s_waitcnt vmcnt(0)")
    e("L_hend:")
    stamp(e, 2)

def p1_compute(e, cfg):
    FB = 192
    def acc(p, ti, gi): return 64 + p*64 + (ti*2 + gi)*16
    def fb(b, ti): return FB + b*16 + ti*4
    def fa(b, gi): return FB + b*16 + 8 + gi*4
    e("s_or_b32 s60, s2, s48\ns_cmp_lg_u32 s60, 0\ns_cbranch_scc1 L_nononce")
    e("s_memrealtime s[62:63]\ns_waitcnt lgkmcnt(0)")
    srd(e, 44, sDBG, 256)
    e("s_mul_i32 s62, s62, 0x9e3779b1\ns_or_b32 s62, s62, 1\nv_mov_b32 v16, s62\nv_mov_b32 v17, 0\ns_mov_b64 exec, 1")
    e("buffer_store_dword v16, v17, s[44:47], 0 offen sc1\ns_mov_b64 exec, -1")
    e("L_nononce:")
    e("v_lshlrev_b32 v62, 4, v0")
    e("s_cmp_eq_u32 s79, 0\ns_cbranch_scc1 L_nokvdma")
    e("s_bitcmp1_b32 s7, 1")
    e(f"s_cselect_b32 s44, s{sWV}, s{sWK}\ns_cselect_b32 s45, s{sWV+1}, s{sWK+1}\ns_mov_b32 s46, 16384\ns_mov_b32 s47, 0x00020000")
    e("s_lshl_b32 s60, s48, 12\ns_lshl_b32 s62, s6, 11\ns_add_u32 s60, s60, s62")
    e(f"s_lshl_b32 s61, s48, 12\ns_add_u32 s61, s61, {MISC}")
    for q in range(4):
        e(f"s_add_u32 m0, s61, {q*1024}\ns_and_b32 s60, s60, 16383")
        e("buffer_load_dwordx4 v62, s[44:47], s60 offen lds")
        e("s_add_u32 s60, s60, 1024")
    startup_norm(e, [], 4)
    e("s_waitcnt vmcnt(0)\ns_branch L_cnorm")
    e("L_nokvdma:")
    startup_norm(e, [], 0)
    e("L_cnorm:")
    srd(e, 44, sDBG, 256)
    e("v_mov_b32 v60, 0")
    e("v_and_b32 v10, 31, v0\nv_lshrrev_b32 v11, 5, v0\nv_bfe_u32 v12, v0, 1, 3\nv_xor_b32 v12, v12, v11\nv_lshlrev_b32 v12, 4, v12")
    e("v_lshl_add_u32 v2, v10, 7, v12\nv_xor_b32 v3, 32, v2\nv_xor_b32 v4, 64, v2\nv_xor_b32 v5, 96, v2")
    e("v_bfe_u32 v12, v0, 4, 1\nv_bfe_u32 v13, v0, 2, 2\nv_and_b32 v14, 3, v0")
    e("s_and_b32 s50, s48, 1\ns_lshl_b32 s50, s50, 1      ; group base\ns_lshr_b32 s49, s48, 1")
    e(f"s_lshl_b32 s61, s49, 12\ns_add_u32 s61, s61, {WR}")
    e("v_lshrrev_b32 v15, 1, v13\nv_lshl_or_b32 v15, v12, 1, v15\nv_xor_b32 v15, s50, v15\nv_lshlrev_b32 v15, 5, v15")
    e("v_lshl_add_u32 v15, v14, 3, v15\nv_lshl_add_u32 v15, v13, 7, v15\nv_lshl_add_u32 v15, v11, 10, v15\nv_lshl_add_u32 v15, v12, 13, v15")
    e("v_add_u32 v6, s61, v15\nv_xor_b32 v7, 32, v6\nv_add_u32 v8, 49152, v6\nv_add_u32 v9, 49152, v7")
    GA = -2*math.sqrt(2/math.pi)*math.log2(math.e); GB = GA*0.044715
    e(f"v_mov_b32 v10, {f2h(GA)}\nv_mov_b32 v11, {f2h(GA)}\nv_mov_b32 v12, {f2h(GB)}\nv_mov_b32 v13, {f2h(GB)}\nv_mov_b32 v56, 1.0\nv_mov_b32 v57, 1.0")
    e("s_mul_i32 s60, s5, 7\ns_add_u32 s60, s60, s49\ns_lshl_b32 s61, s79, 2\ns_add_u32 s60, s60, s61\ns_add_u32 s60, s60, 1     ; H1")
    e(f"s_lshl_b32 s60, s60, 2\ns_add_u32 s60, s60, s50\ns_mul_i32 s61, s6, 224\ns_add_u32 s60, s60, s61\ns_lshl_b32 s60, s60, 10\ns_add_u32 s52, s60, {WS_H}")
    e(f"s_add_u32 s53, s52, {112*1024}\ns_add_u32 s60, s79, 1\ns_lshl_b32 s60, s60, 12\ns_sub_u32 s54, s52, s60\ns_sub_u32 s55, s53, s60")
    e("s_setprio 1")
    def reads(s):
        b = s % 3; T = s >> 1; slot = T % NSLOT
        a = [[f"ds_read_b64_tr_b16 {vr(fa(b,gi)+2*tp,2)}, v{6+gi+2*(slot//3)} offset:{(slot%3)*16384 + (s&1)*2048 + tp*512}" for tp in range(2)] for gi in range(2)]
        x = [f"ds_read_b128 {vr(fb(b,ti),4)}, v{2+(s&3)} offset:{((s>>2)&7)*8192 + ti*4096}" for ti in range(2)]
        return a, x
    def cost(o):
        return sum(8 if l.startswith(("v_exp", "v_rcp")) else 4 for l in o.split("\n"))
    def take(ops, budget, s=99):
        out = []
        while ops:
            o = ops[0]
            if isinstance(o, tuple):
                if s < o[0]: break
                o = o[1]
            if cost(o) > budget and (out or cost(o) <= 24): break
            budget -= cost(o); out.append(o); ops.pop(0)
        return out
    KVACC = 128
    def kvb(b, u): return 144 + b*16 + u*8
    def kvreads(s):
        b = s % 3; out = []
        for u in range(2):
            out += [f"ds_read_b128 {vr(kvb(b,u),4)}, v{20+u} offset:{s*8192}"]
            out += [f"ds_read_b64_tr_b16 {vr(kvb(b,u)+4+2*tp,2)}, v24 offset:{s*2048 + u*1024 + tp*128}" for tp in range(2)]
        return out
    def kstep(s, fill, kv=None):
        if s in KS: stamp(e, 4 + KS.index(s), True)
        b = s % 3; p = s >> 5
        nrd = 0
        bar = s + 2 < 64 and s % 2 == 0
        sched = {0: [], 1: [], 2: [], 3: []}
        if s + 2 < 64:
            a, x = reads(s+2); nrd = 6
            if bar: sched = {0: [], 1: a[0], 2: a[1], 3: x}
            else: sched = {0: a[0], 1: a[1], 2: x, 3: []}
        if kv is not None and s < 8:
            kr = kvreads(s+2) if s + 2 < 8 else []
            nrd += len(kr)
            for u in range(2):
                cc = "0" if s == 0 and u == 0 else vr(KVACC,4)
                a_, b_ = (kvb(b,u)+4, kvb(b,u)) if kv == "K" else (kvb(b,u), kvb(b,u)+4)
                e(f"v_mfma_f32_16x16x32_bf16 {vr(KVACC,4)}, {vr(a_,4)}, {vr(b_,4)}, {cc}")
                if kr: e(kr[u])
            if kr:
                if bar:
                    for k in range(3): sched[1+k] = sched[1+k] + [kr[2+k]]
                    sched[3] = sched[3] + [kr[5]]
                else:
                    for k in range(3): sched[k] = sched[k] + [kr[2+k]]
                    sched[2] = sched[2] + [kr[5]]
        mi = 0
        for ti in range(2):
            for gi in range(2):
                cc = "0" if (s & 31) == 0 else vr(acc(p,ti,gi),16)
                e(f"{MFMA} {vr(acc(p,ti,gi),16)}, {vr(fa(b,gi),4)}, {vr(fb(b,ti),4)}, {cc}")
                if bar and mi == 1:
                    e("s_waitcnt lgkmcnt(0)")
                    e("s_barrier")
                if mi == 3 and not bar and s + 1 < 64:
                    e(f"s_waitcnt lgkmcnt({nrd})")
                for r in sched[mi]: e(r)
                budget = cfg.get("b0", 24) - cfg.get("brd", 6)*len(sched[mi]) - (4 if (bar and mi == 1) else 0)
                for o in fill(mi, budget): e(o)
                mi += 1
    SK1 = cfg.get("skpub", 24)
    OP = 16
    def common(s):
        if s == 1: return ["buffer_load_dword v61, v60, s[44:47], 0 offen sc1"]
        if s == 13: return ["s_waitcnt vmcnt(%d)", nonce_take(e, 61, 60, 44)]
        if s == 29: return [f"v_mov_b32 v58, {CNT}\nv_mov_b32 v16, 0\nv_mov_b32 v17, 0\nv_mov_b32 v18, 0\nv_mov_b32 v19, 0\ns_mov_b64 exec, 1\nds_write_b128 v58, v[16:19]\ns_mov_b64 exec, -1"]
        return []
    def first_steps(kv):
        e("s_waitcnt lgkmcnt(0)")
        e("s_barrier")
        stamp(e, 1)
        for s in range(2):
            a, x = reads(s)
            for r in (kvreads(s) if kv else []) + a[0] + [x[0]] + a[1] + [x[1]]: e(r)
        e(f"s_waitcnt lgkmcnt({12 if kv else 6})")
        post = []
        if kv:
            post = [f"v_cvt_pk_bf16_f32 v{KVACC+4}, v{KVACC}, v{KVACC+1}", f"v_cvt_pk_bf16_f32 v{KVACC+5}, v{KVACC+2}, v{KVACC+3}",
                    f"buffer_store_dwordx2 {vr(KVACC+4,2)}, v25, s[40:43], s61 offen sc1"]
            if kv == "V":
                post += ["v_cmp_eq_u32 vcc, 0, v0", "v_mov_b32 v30, 0x3f803f80", "s_nop 0"]
                post += [f"v_cndmask_b32 v{KVACC+8+k}, 0, v30, vcc" for k in range(4)]
                post += [f"s_mov_b64 exec, 3\nbuffer_store_dwordx4 {vr(KVACC+8,4)}, v62, s[40:43], s61 offen offset:512 sc1\ns_mov_b64 exec, -1"]
        nst = (0 if not kv else 1 if kv == "K" else 2)
        for s in range(SK1):
            def f(mi, budget):
                if mi == 3 and s in (1, 13):
                    if s == 13: assert not post
                    return [x % nst if "%d" in x else x for x in common(s)]
                if kv and s == SK1 - 1 and mi == 3:
                    return [flag_set(30, 31, "s60", "s_waitcnt vmcnt(0)")]
                if s >= 8 and (s > 8 or mi > 0): return take(post, budget)
                return []
            kstep(s, f, kv)
    e(f"s_lshl_b32 s74, s6, 1\ns_and_b32 s61, s48, 1\ns_add_u32 s74, s74, s61\ns_lshl_b32 s74, s74, 5\ns_lshl_b32 s61, s7, 2\ns_add_u32 s74, s74, s61\ns_and_b32 s61, s48, 2\ns_add_u32 s74, s74, s61\ns_lshl_b32 s74, s74, 10\ns_add_u32 s74, s74, {WS_O}")
    e("s_cmp_gt_u32 s79, s49\ns_cbranch_scc1 L_ckv")
    first_steps(None)
    e("L_kvjoin:")
    for s in range(SK1, 32): kstep(s, lambda mi, budget: common(s) if mi == 3 and s % 2 == 1 else [])
    stamp(e, 13)
    e("s_cmp_gt_u32 s49, s79\ns_cbranch_scc1 L_p1q")
    def gelu_ops(p, ti, gi, pk):
        a = acc(p, ti, gi); T = 16 + ((ti*2+gi) & 1)*8*0; o = 24 + p*16 + (ti*2+gi)*4
        ops = []
        P = lambda x: vr(x, 2)
        if pk:
            ops += [f"v_pk_mul_f32 {P(T+2*k)}, {P(a+2*k)}, {P(a+2*k)}" for k in range(4)]
            ops += [f"v_pk_fma_f32 {P(T+2*k)}, {P(T+2*k)}, v[12:13], v[10:11]" for k in range(4)]
            ops += [f"v_pk_mul_f32 {P(T+2*k)}, {P(T+2*k)}, {P(a+2*k)}" for k in range(4)]
            for k in range(4):
                ops += [f"v_exp_f32 v{T+2*k}, v{T+2*k}", f"v_exp_f32 v{T+2*k+1}, v{T+2*k+1}", f"v_pk_mul_f32 {P(a+2*k)}, {P(a+2*k)}, {P(a+8+2*k)}"]
            ops += [f"v_pk_add_f32 {P(T+2*k)}, {P(T+2*k)}, v[56:57]" for k in range(4)]
            ops += [f"v_rcp_f32 v{T+k}, v{T+k}" for k in range(8)]
            ops += [f"v_pk_mul_f32 {P(a+2*k)}, {P(a+2*k)}, {P(T+2*k)}" for k in range(4)]
        else:
            ops += [f"v_mul_f32 v{T+k}, v{a+k}, v{a+k}" for k in range(8)]
            ops += [f"v_fma_f32 v{T+k}, v{T+k}, v12, v10" for k in range(8)]
            ops += [f"v_mul_f32 v{T+k}, v{T+k}, v{a+k}" for k in range(8)]
            for k in range(8):
                ops += [f"v_exp_f32 v{T+k}, v{T+k}", f"v_mul_f32 v{a+k}, v{a+k}, v{a+8+k}"]
            ops.append(f"v_add_f32 v{T}, 1.0, v{T}")
            for k in range(8):
                if k < 7: ops.append(f"v_add_f32 v{T+k+1}, 1.0, v{T+k+1}")
                ops.append(f"v_rcp_f32 v{T+k}, v{T+k}")
            ops += [f"v_mul_f32 v{a+k}, v{a+k}, v{T+k}" for k in range(8)]
        ops += [f"v_cvt_pk_bf16_f32 v{o+k}, v{a+2*k}, v{a+2*k+1}" for k in range(4)]
        ops.append(f"buffer_store_dwordx4 {vr(o,4)}, v62, s[40:43], s{(54 if p == 0 else 52)+ti} offen offset:{gi*1024} sc1")
        return ops
    def q_ops(ti, gi):
        a = acc(0, ti, gi); o = 24 + ((ti*2+gi) & 1)*8
        ops = []
        for hh in range(2):
            ops += [f"v_mul_f32 v{a+8*hh+k}, s58, v{a+8*hh+k}" for k in range(8)]
            ops += [f"v_cvt_pk_bf16_f32 v{o+4*hh+k}, v{a+8*hh+2*k}, v{a+8*hh+2*k+1}" for k in range(4)]
            ops.append(f"buffer_store_dwordx4 {vr(o+4*hh,4)}, v62, s[40:43], s{54+2*hh+ti} offen offset:{gi*1024} sc1")
        return ops
    def pass1(ops, extra, qcu):
        for s in range(32, 64):
            def fill(mi, budget):
                if s < 33: return []
                return take(ops, budget + extra, s)
            kstep(s, fill)
            if qcu and s == cfg.get("sqpub", 48):
                assert not ops
                e(flag_set(58, 59, "s51", "s_waitcnt vmcnt(0)"))
            if s == 62: lds_arrive(e, 0, 16, va=58, vv=59)
        for o in ops: e(o[1] if isinstance(o, tuple) else o)
        print("left ops", len(ops))
    tiles = [(ti, gi) for ti in range(2) for gi in range(2)]
    gl = [gelu_ops(0, ti, gi, False) for ti, gi in tiles]
    ops0 = sum((x[:-1] for x in gl), [])
    pass1(ops0, 0, False)
    e("s_branch L_p1e")
    e("L_ckv:")
    e("v_and_b32 v26, 15, v0\nv_lshrrev_b32 v27, 4, v0\nv_bfe_u32 v28, v0, 1, 3\nv_xor_b32 v28, v28, v27\nv_lshlrev_b32 v28, 4, v28\nv_lshl_add_u32 v28, v26, 7, v28")
    e("s_and_b32 s62, s7, 1\ns_lshl_b32 s60, s62, 12\ns_lshl_b32 s61, s48, 11\ns_add_u32 s60, s60, s61\nv_add_u32 v20, s60, v28\nv_xor_b32 v21, 64, v20")
    e(f"v_lshlrev_b32 v24, 3, v26\nv_lshl_add_u32 v24, v27, 8, v24\nv_add_u32 v24, {MISC}, v24")
    e(f"s_lshl_b32 s61, s6, 1\ns_add_u32 s61, s61, s62\ns_mul_i32 s61, s61, {KT}\ns_add_u32 s61, s61, {WS_KV}")
    e(f"s_lshl_b32 s60, s6, 7\ns_lshl_b32 s62, s5, 3\ns_add_u32 s60, s60, s62\ns_lshl_b32 s62, s48, 2\ns_add_u32 s60, s60, s62\ns_add_u32 s60, s60, {WS_FKV}")
    e("v_lshlrev_b32 v25, 4, v26\nv_and_b32 v28, 1, v27\nv_lshrrev_b32 v29, 1, v27")
    e("s_bitcmp1_b32 s7, 1\ns_cbranch_scc1 L_cv")
    e("v_lshl_add_u32 v25, v28, 9, v25\nv_lshl_add_u32 v25, v29, 3, v25\ns_lshl_b32 s62, s48, 8\ns_add_u32 s61, s61, s62")
    first_steps("K")
    e("s_branch L_kvjoin")
    e("L_cv:")
    e(f"v_lshl_add_u32 v25, v29, 8, v25\nv_lshl_add_u32 v25, v28, 3, v25\ns_mul_i32 s62, s48, {VG}\ns_add_u32 s61, s61, s62\ns_add_u32 s61, s61, 1024")
    first_steps("V")
    e("s_branch L_kvjoin")
    e("L_p1q:")
    e(f"s_mov_b32 s58, {f2h(QSCALE)}")
    e("s_lshl_b32 s60, s6, 6\ns_lshl_b32 s61, s5, 3\ns_add_u32 s60, s60, s61\ns_add_u32 s60, s60, s50\ns_lshl_b32 s54, s60, 10\ns_add_u32 s55, s54, 32768")
    e("s_add_u32 s56, s54, 4096\ns_add_u32 s57, s55, 4096")
    e(f"s_lshl_b32 s51, s6, 7\ns_lshl_b32 s60, s5, 3\ns_add_u32 s51, s51, s60\ns_lshl_b32 s60, s50, 1\ns_add_u32 s51, s51, s60\ns_add_u32 s51, s51, {WS_FQ}")
    pass1(sum((q_ops(ti, gi) for ti, gi in tiles), []), cfg.get("qextra", 0), True)
    e("L_p1e:")
    stamp(e, 2)
    e("s_setprio 2\ns_nop 7")
    for ti, gi in tiles:
        for o in gelu_ops(1, ti, gi, True)[:-1]: e(o)
    stamp(e, 3)
    e("s_mov_b32 s72, s52\ns_mov_b32 s73, s53\ns_mov_b32 s75, s54\ns_mov_b32 s76, s55\ns_cmp_gt_u32 s49, s79\ns_cselect_b32 s77, 1, 0")

def phase2_a(e, cfg):
    U = 8
    OFF = float(cfg.get("off", 96))
    SA, SB, CA, CB, OA, OB, QA, QB = AREG
    e(f"s_setprio {cfg.get('aprio0', 3)}")
    e(f"{MFMA} {vr(SA,16)}, {vr(KB[0],4)}, {vr(QA,4)}, 0")
    e(f"{MFMA} {vr(SB,16)}, {vr(KB[0],4)}, {vr(QB,4)}, 0")
    e("s_nop 10")
    def maxtree(S, d, first):
        if first:
            e(f"v_max3_f32 v{d}, v{S}, v{S+1}, v{S+2}")
            for k in range(3, 15, 2): e(f"v_max3_f32 v{d}, v{d}, v{S+k}, v{S+k+1}")
            e(f"v_max_f32 v{d}, v{d}, v{S+15}")
        else:
            for k in range(0, 16, 2): e(f"v_max3_f32 v{d}, v{d}, v{S+k}, v{S+k+1}")
    maxtree(SA, 8, True); maxtree(SB, 9, True)
    e(f"s_mov_b32 s52, {f2h(-OFF)}")
    e("L_setmax:")
    e("v_mov_b32 v10, v8\nv_mov_b32 v11, v9\nv_mov_b32 v3, v6\nv_mov_b32 v4, v5\nv_permlane32_swap_b32 v8, v10\nv_permlane32_swap_b32 v9, v11\ns_nop 0")
    e("v_max_f32 v8, v8, v10\nv_max_f32 v9, v9, v11\nv_sub_f32 v8, s52, v8\nv_sub_f32 v9, s52, v9")
    for k in range(16): e(f"v_mov_b32 v{CA+k}, v8")
    for k in range(16): e(f"v_mov_b32 v{CB+k}, v9")
    e(f"{MFMA} {vr(SA,16)}, {vr(KB[0],4)}, {vr(QA,4)}, {vr(CA,16)}")
    for k in range(8): e(f"v_mov_b32 v{SB+8+k}, 0")
    for k in range(4): e(f"v_mov_b32 v{V2[1]+k}, 0")
    e("s_cmp_lg_u32 s51, 0\ns_cbranch_scc1 L_nosync")
    e("s_setprio 0\ns_waitcnt vmcnt(0)")
    lds_arrive(e, 0, 1)
    stamp(e, 5)
    lds_wait(e, 0, 15, 4)
    e(f"s_setprio {cfg.get('aprio', 1)}")
    e("L_nosync:")
    e(f"ds_read_b128 {vr(V1[0],4)}, v4")
    e(f"ds_read_b128 {vr(V2[0],4)}, v4 offset:{VG}")
    e(f"ds_read_b128 {vr(KB[1],4)}, v3 offset:{KT}")
    e(f"ds_read_b128 {vr(V1[1],4)}, v4 offset:{KT}")
    e("s_waitcnt lgkmcnt(3)")
    n1 = 2
    assert (n1*U + 2)*KT <= 4*NEARLY*1024
    e(f"s_cmp_eq_u32 s51, 0\ns_cselect_b32 s53, {n1}, {64//U}")
    stamp(e, 6)
    e(".p2align 3")
    e("L_loop:")
    def ex(S, ks):
        for k in ks: e(f"v_exp_f32 v{S+k}, v{S+k}")
    sched = cfg.get("asched", "base")
    Y = cfg.get("yield", "")
    ys = [int(x) for x in str(Y).split("_")] if Y != "" else []
    def exy(S, ks):
        for k in ks:
            e(f"v_exp_f32 v{S+k}, v{S+k}")
            if k in ys: e("s_nop 0")
    for u in range(U):
        b = u & 1
        if sched == "base":
            exy(SA, [0, 1])
            e(f"{SMF} {vr(OB,16)}, {vr(V2[b^1],4)}, {vr(SB+8,8)}, v2")
            e(f"ds_read_b128 {vr(V2[b^1],4)}, v4 offset:{(u+1)*KT + VG}")
            exy(SA, [2, 3, 4])
            e(f"{MFMA} {vr(SB,16)}, {vr(KB[b],4)}, {vr(QB,4)}, {vr(CB,16)}")
            e(f"ds_read_b128 {vr(KB[b],4)}, v3 offset:{(u+2)*KT}")
            exy(SA, [5, 6, 7, 8, 9])
            e(f"{SMF} {vr(OA,16)}, {vr(V1[b],4)}, {vr(SA,8)}, v2")
            e("s_waitcnt lgkmcnt(2)")
            if u == U-1: e("s_sub_u32 s53, s53, 1")
            exy(SA, range(10, 16))
            exy(SB, [0, 1])
            e(f"{SMF} {vr(OA,16)}, {vr(V2[b],4)}, {vr(SA+8,8)}, v2")
            if u == U-1: e("s_cmp_lg_u32 s53, 0")
            exy(SB, [2, 3, 4])
            e(f"{MFMA} {vr(SA,16)}, {vr(KB[b^1],4)}, {vr(QA,4)}, {vr(CA,16)}")
            exy(SB, [5, 6, 7, 8, 9])
            e(f"{SMF} {vr(OB,16)}, {vr(V1[b],4)}, {vr(SB,8)}, v2")
            e(f"ds_read_b128 {vr(V1[b],4)}, v4 offset:{(u+2)*KT}")
            if u == U-1:
                e(f"v_add_u32 v3, {U*KT}, v3\nv_add_u32 v4, {U*KT}, v4")
            exy(SB, range(10, 16))
        else:
            P = cfg.get("pv1", 14)
            exy(SA, [0, 1])
            e(f"{SMF} {vr(OB,16)}, {vr(V2[b^1],4)}, {vr(SB+8,8)}, v2")
            e(f"ds_read_b128 {vr(V2[b^1],4)}, v4 offset:{(u+1)*KT + VG}")
            exy(SA, [2, 3, 4])
            e(f"{MFMA} {vr(SB,16)}, {vr(KB[b],4)}, {vr(QB,4)}, {vr(CB,16)}")
            e(f"ds_read_b128 {vr(KB[b],4)}, v3 offset:{(u+2)*KT}")
            exy(SA, range(5, P+1))
            e(f"{SMF} {vr(OA,16)}, {vr(V1[b],4)}, {vr(SA,8)}, v2")
            e("s_waitcnt lgkmcnt(2)")
            if u == U-1: e("s_sub_u32 s53, s53, 1")
            exy(SA, range(P+1, 16))
            exy(SB, [0, 1])
            e(f"{SMF} {vr(OA,16)}, {vr(V2[b],4)}, {vr(SA+8,8)}, v2")
            if u == U-1: e("s_cmp_lg_u32 s53, 0")
            exy(SB, [2, 3, 4])
            e(f"{MFMA} {vr(SA,16)}, {vr(KB[b^1],4)}, {vr(QA,4)}, {vr(CA,16)}")
            exy(SB, range(5, P+1))
            e(f"{SMF} {vr(OB,16)}, {vr(V1[b],4)}, {vr(SB,8)}, v2")
            e(f"ds_read_b128 {vr(V1[b],4)}, v4 offset:{(u+2)*KT}")
            if u == U-1:
                e(f"v_add_u32 v3, {U*KT}, v3\nv_add_u32 v4, {U*KT}, v4")
            exy(SB, range(P+1, 16))
    e("s_cbranch_scc1 L_loop")
    e("s_cmp_ge_u32 s51, 2\ns_cbranch_scc1 L_fin")
    e("s_cmp_eq_u32 s51, 0\ns_cselect_b32 s53, 2, 4\ns_cselect_b32 s55, 15, -1\ns_cselect_b32 s56, 4, 68\ns_cselect_b32 s51, 1, 3")
    lds_wait(e, 4, "s55", "s56")
    e("s_branch L_loop")
    e("L_fin:")
    e(f"{SMF} {vr(OB,16)}, {vr(V2[1],4)}, {vr(SB+8,8)}, v2")
    stamp(e, 7)
    T1, T2 = CA, CA + 8
    e(f"s_add_u32 s60, s50, {WS_O}\nv_rcp_f32 v8, v{OA+8}\ns_mov_b32 s54, {f2h(2.0**20)}")
    for k in range(8): e(f"v_mul_f32 v{T1+k}, v8, v{OA+k}")
    for k in range(4): e(f"v_cvt_pk_bf16_f32 v{CB+k}, v{T1+2*k}, v{T1+2*k+1}")
    e(f"v_rcp_f32 v10, v{OB+8}")
    e(f"v_mul_f32 v8, s54, v{OA+8}\nv_mul_f32 v9, s54, v{OB+8}\nv_mov_b32 v12, 0\nv_mov_b32 v13, 0")
    for k in range(8): e(f"v_mul_f32 v{T2+k}, v10, v{OB+k}")
    e("v_pk_mul_f32 v[8:9], v[8:9], v[12:13]")
    for k in range(4): e(f"v_pk_fma_f32 v[8:9], {vr(OA+2*k,2)}, v[12:13], v[8:9]\nv_cvt_pk_bf16_f32 v{CB+4+k}, v{T2+2*k}, v{T2+2*k+1}")
    for k in range(4): e(f"v_pk_fma_f32 v[8:9], {vr(OB+2*k,2)}, v[12:13], v[8:9]\nv_min_u32 v{CB+k}, -2, v{CB+k}")
    e("v_cmp_u_f32 vcc, v8, v9")
    for k in range(4): e(f"v_min_u32 v{CB+4+k}, -2, v{CB+4+k}")
    e("s_cmp_eq_u32 s51, 2\ns_cbranch_scc1 L_pub\ns_cbranch_vccnz L_fallback")
    e("L_pub:")
    e(f"buffer_store_dwordx4 {vr(CB,4)}, v6, s[40:43], s60 offen sc1")
    e(f"buffer_store_dwordx4 {vr(CB+4,4)}, v6, s[40:43], s60 offen offset:1024 sc1")
    lds_arrive(e, 8, 1)
    stamp(e, 8)
    e("s_branch L_end")

    e("L_fallback:")
    e("s_waitcnt lgkmcnt(0)")
    e("s_mov_b32 s51, 2\ns_mov_b32 s52, 0\ns_mov_b32 s53, 64\nv_mov_b32 v3, v6\nv_mov_b32 v8, 0xff800000\nv_mov_b32 v9, 0xff800000")
    for k in range(16): e(f"v_mov_b32 v{OA+k}, 0\nv_mov_b32 v{OB+k}, 0")
    e("L_mx:")
    e(f"ds_read_b128 {vr(KB[0],4)}, v3\nv_add_u32 v3, {KT}, v3\ns_waitcnt lgkmcnt(0)")
    e(f"{MFMA} {vr(SA,16)}, {vr(KB[0],4)}, {vr(QA,4)}, 0")
    e(f"{MFMA} {vr(SB,16)}, {vr(KB[0],4)}, {vr(QB,4)}, 0")
    e("s_nop 11")
    maxtree(SA, 8, False); maxtree(SB, 9, False)
    e("s_sub_u32 s53, s53, 1\ns_cmp_lg_u32 s53, 0\ns_cbranch_scc1 L_mx")
    e(f"ds_read_b128 {vr(KB[0],4)}, v6\ns_waitcnt vmcnt(0) lgkmcnt(0)")
    e("s_branch L_setmax")

def phase2_g(e, cfg):
    NREST = (NCH - 4*NEARLY) // 4
    assert NREST*4 + 4*NEARLY == NCH
    GSZ = 6144
    GACC, WO, HS, AF = 16, 80, 208, 240
    e("v_lshlrev_b32 v6, 4, v0")
    e(f"s_mul_i32 s49, s48, {GSZ}\ns_add_u32 s49, s49, {LG}")
    e("v_lshrrev_b32 v10, 3, v0\nv_and_b32 v11, 7, v0\nv_and_b32 v12, 2, v10\nv_lshlrev_b32 v12, 1, v12\nv_xor_b32 v12, v12, v11")
    e("s_lshl_b32 s60, s7, 7\nv_lshlrev_b32 v2, 10, v10\nv_lshl_add_u32 v2, v12, 4, v2\nv_add_u32 v2, s60, v2\nv_add_u32 v3, 7168, v2")
    e("v_bfe_u32 v12, v0, 2, 2\nv_lshrrev_b32 v13, 5, v0\nv_lshl_add_u32 v13, v13, 2, v12\nv_lshlrev_b32 v4, 7, v13")
    e("s_and_b32 s50, s48, 1\ns_lshr_b32 s51, s48, 1")
    e("v_lshrrev_b32 v12, 1, v12\nv_xor_b32 v12, s50, v12\nv_lshl_add_u32 v4, v12, 6, v4\nv_bfe_u32 v12, v0, 4, 1\nv_lshl_add_u32 v4, v12, 5, v4\nv_and_b32 v12, 3, v0\nv_lshl_add_u32 v4, v12, 3, v4")
    e("v_add_u32 v4, s49, v4\nv_xor_b32 v5, 64, v4")
    srd(e, 36, sWD, 1835008)
    srd(e, 44, sWO, 524288)
    e(f"s_mul_i32 s60, s6, 224\ns_mul_i32 s61, s48, 28\ns_add_u32 s60, s60, s61\ns_lshl_b32 s60, s60, 10\ns_add_u32 s60, s60, {WS_H}")
    e(f"s_mul_i32 s61, s51, {112*1024}\ns_add_u32 s62, s60, s61\ns_add_u32 s60, s60, {112*1024}\ns_sub_u32 s60, s60, s61")
    e("v_add_u32 v7, s62, v6\nv_add_u32 v8, s60, v6")
    e(f"s_mul_i32 s55, s48, {28*16*1024}")
    e("s_and_b32 s60, s6, 7\ns_lshl_b32 s61, s78, 1\ns_add_u32 s60, s60, s61\ns_cmp_ge_u32 s60, 7\ns_cselect_b32 s61, 7, 0\ns_sub_u32 s60, s60, s61\ns_lshl_b32 s57, s60, 12")
    e(f"s_lshl_b32 s64, s48, 10\ns_add_u32 s64, s64, {4*NEARLY*1024}")
    e(f"s_lshl_b32 s60, s6, 10\ns_lshl_b32 s61, s5, 8\ns_add_u32 s60, s60, s61\ns_lshl_b32 s61, s79, 4\ns_add_u32 s60, s60, s61\ns_lshl_b32 s61, s48, 2\ns_add_u32 s60, s60, s61\ns_add_u32 s67, s60, {WS_F+128}")
    e(f"s_lshl_b32 s61, s6, 10\ns_lshl_b32 s62, s48, 8\ns_add_u32 s61, s61, s62\ns_add_u32 s66, s61, {WS_F+128}")
    e("v_and_b32 v11, 7, v0\nv_lshlrev_b32 v11, 2, v11")
    e(f"v_add_u32 v9, s49, v6\nv_mov_b32 v1, 1\nv_mov_b32 v12, s{sN}\nv_mov_b32 v13, 0")
    for k in range(4): e(f"v_mov_b32 v{16+k}, -1")
    e("v_mov_b32 v20, 16")
    e("s_add_u32 s54, s7, 1\ns_and_b32 s54, s54, 3\nv_subrev_u32 v21, s49, v4")
    for c in range(4):
        e(f"s_add_u32 s60, s54, {c}\ns_and_b32 s60, s60, 3\ns_lshl_b32 s60, s60, 13\ns_lshl_b32 s61, s50, 15\ns_add_u32 s60, s60, s61\ns_add_u32 s60, s60, {(4*NEARLY + 44)*1024}")
        e(f"v_add_u32 v{56+2*c}, s60, v21\nv_xor_b32 v{57+2*c}, 64, v{56+2*c}")
    for a in range(1, 4):
        e(f"s_xor_b32 s60, s48, {a}\ns_mul_i32 s60, s60, {GSZ}\ns_add_u32 s{67+a}, s60, {LG + (a-1)*2048}")
    lds_wait(e, 0, 255, 68)
    e(f"s_setprio {cfg.get('gprio', 0)}")
    stamp(e, 4)
    N1 = 11; WOS = (4*NEARLY + 4*N1)*1024
    assert 40*KT <= WOS and WOS + 65536 <= CNT
    def kvrest(q0, q1):
        for q in range(q0, q1):
            e(f"s_add_u32 m0, s64, {q*4096}\ns_add_u32 s61, s64, {WS_KV + q*4096}")
            e("buffer_load_dwordx4 v6, s[40:43], s61 offen sc1 lds")
    def arrive(off, vv=1, va=14):
        e(f"s_mov_b64 exec, 1\nds_add_u32 v{va}, v{vv} offset:{off}\ns_mov_b64 exec, -1")
    def wait(off, val, va=14, vt=15, prio=True):
        L = e.new("gw"); D = e.new("gwd")
        if prio: e("s_setprio 2")
        e(f"s_mov_b32 s62, {SPIN*8}\n{L}:")
        e(f"ds_read_b32 v{vt}, v{va} offset:{off}\ns_waitcnt lgkmcnt(0)\nv_readfirstlane_b32 s63, v{vt}\ns_sub_u32 s62, s62, 1\ns_nop 2")
        e(f"s_cmp_ge_u32 s63, {val}\ns_cbranch_scc1 {D}\ns_sleep {cfg.get('gsleep', 3)}\ns_cmp_lg_u32 s62, 0\ns_cbranch_scc1 {L}\n{D}:")
        if prio: e("s_setprio 0")
    kvrest(0, N1)
    e(f"s_lshl_b32 s58, s48, 17\ns_lshl_b32 s59, s48, 14\ns_add_u32 s59, s59, {WOS}")
    for j in range(8):
        e(f"s_add_u32 m0, s59, {j*2048}")
        e("s_nop 0" if j == 0 else "s_add_u32 s58, s58, 16384")
        e("buffer_load_dwordx4 v2, s[44:47], s58 offen lds")
        e("buffer_load_dwordx4 v3, s[44:47], s58 offen offset:1024 lds")
        if j == 3:
            e("s_waitcnt vmcnt(8)")
            arrive(4)
            stamp(e, 6)
    for t in range(4): e(f"buffer_store_dwordx4 {vr(40+4*t,4)}, v6, s[40:43], s{72+(t>>1)} offen offset:{(t&1)*1024} sc1")
    for q in range(2): e(f"buffer_store_dwordx4 v[16:19], v6, s[40:43], s74 offen offset:{q*1024} sc1")
    e("s_waitcnt vmcnt(6)")
    arrive(12)
    LQ = e.new("noh0")
    e(f"s_cmp_lg_u32 s77, 0\ns_cbranch_scc1 {LQ}")
    for t in range(4): e(f"buffer_store_dwordx4 {vr(24+4*t,4)}, v6, s[40:43], s{75+(t>>1)} offen offset:{(t&1)*1024} sc1")
    e(f"{LQ}:")
    wait(12, 4)
    for j in range(16):
        for ma in range(2):
            for tp in range(2):
                e(f"ds_read_b64_tr_b16 {vr(WO+j*8+ma*4+tp*2,2)}, v{56+(j>>2)*2+ma} offset:{(j&3)*2048+tp*1024}")
    e("s_waitcnt lgkmcnt(0)")
    arrive(12)
    e("s_waitcnt vmcnt(0)")
    e("s_mov_b64 exec, 1\nbuffer_store_dword v12, v13, s[40:43], s67 offen sc1\ns_mov_b64 exec, -1")
    wait(12, 8)
    kvrest(N1, NREST)
    e("s_waitcnt vmcnt(0)")
    arrive(4, vv=20)
    def trs(dst, j):
        for ma in range(2):
            for tp in range(2):
                e(f"ds_read_b64_tr_b16 {vr(dst+ma*4+tp*2,2)}, v{4+ma} offset:{(j%3)*2048+tp*1024}")
        e("s_waitcnt lgkmcnt(0)")
    e("s_setprio 2")
    poll(e, 11, "s66", sleep=2)
    e("s_setprio 0")
    stamp(e, 7)
    def issue(j):
        if j >= 28: return 0
        e(f"s_add_u32 m0, s49, {(j % 3)*2048}")
        if j % 4 == 0: e("s_lshl_b32 s56, s57, 4\ns_add_u32 s56, s56, s55")
        else: e("s_add_u32 s56, s56, 16384")
        e("buffer_load_dwordx4 v2, s[36:39], s56 offen lds")
        e("buffer_load_dwordx4 v3, s[36:39], s56 offen offset:1024 lds")
        for ta in range(2):
            e(f"buffer_load_dwordx4 {vr(HS+(j%4)*8+ta*4,4)}, v{7+ta}, s[40:43], s57 offen offset:{(j%4)*1024} sc1")
        if j % 4 == 3: e(f"s_add_u32 s57, s57, 4096\ns_cmp_ge_u32 s57, {7*4096}\ns_cselect_b32 s57, 0, s57")
        return 4
    cnt = {}
    for j in range(3): cnt[j] = issue(j)
    for j in range(28):
        e(f"s_waitcnt vmcnt({cnt.get(j+1,0) + cnt.get(j+2,0)})")
        dst = AF + (j & 1)*8
        trs(dst, j)
        cnt[j+3] = issue(j+3)
        for ta in range(2):
            for ma in range(2):
                a = GACC + (ta*2+ma)*16
                cc = "0" if j == 0 else vr(a,16)
                if not cfg.get("nogm"): e(f"{MFMA} {vr(a,16)}, {vr(dst+ma*4,4)}, {vr(HS+(j%4)*8+ta*4,4)}, {cc}")
    stamp(e, 11)
    e("s_setprio 2")
    srd(e, 44, sOUT, 2097152)
    e("v_and_b32 v2, 31, v0\nv_lshrrev_b32 v3, 5, v0\nv_lshlrev_b32 v2, 10, v2\nv_lshl_add_u32 v1, v3, 3, v2\nv_lshl_add_u32 v2, v3, 4, v2\nv_mov_b32 v3, v9")
    e("s_lshl_b32 s55, s6, 16\ns_lshl_b32 s60, s51, 15\ns_add_u32 s55, s55, s60\ns_lshl_b32 s60, s7, 7\ns_add_u32 s55, s55, s60\ns_lshl_b32 s60, s50, 6\ns_add_u32 s55, s55, s60")
    for q in range(4): e(f"buffer_load_dwordx2 {vr(8+2*q,2)}, v1, s[32:35], s55 offen offset:{q*16}")
    e(f"v_add_u32 v1, s68, v6\nv_add_u32 v208, s69, v6\nv_add_u32 v209, s70, v6\nv_mov_b32 v4, {CNT}\nv_mov_b32 v7, 1")
    pa = {1: 1, 2: 208, 3: 209}
    e("s_setprio 0")
    for hf in range(2):
        for a in range(1, 4):
            for q in range(2):
                e(f"ds_write_b128 v3, {vr(GACC+a*16+hf*8+q*4,4)} offset:{(a-1)*2048+q*1024}")
        e("s_waitcnt lgkmcnt(0)")
        arrive(12, vv=7, va=4); wait(12, 12 + 8*hf, va=4, vt=5)
        for a in range(1, 4):
            for q in range(2):
                e(f"ds_read_b128 {vr(GACC+a*16+hf*8+q*4,4)}, v{pa[a]} offset:{q*1024}")
        e("s_waitcnt lgkmcnt(0)")
        if hf == 0: arrive(12, vv=7, va=4); wait(12, 16, va=4, vt=5)
    e(f"s_lshl_b32 s60, s6, 1\ns_add_u32 s60, s60, s51\ns_lshl_b32 s60, s60, 5\ns_lshl_b32 s61, s50, 4\ns_add_u32 s60, s60, s61\ns_lshl_b32 s60, s60, 10\ns_add_u32 s60, s60, {WS_O}")
    for c in range(4):
        e(f"s_add_u32 s61, s54, {c}\ns_and_b32 s61, s61, 3\ns_lshl_b32 s61, s61, 12\ns_add_u32 s{56+c}, s60, s61")
    stamp(e, 8)
    wait(8, 4, va=4, vt=5, prio=False)
    stamp(e, 5)
    e(f"v_subrev_u32 v3, {LG}, v3\nv_subrev_u32 v1, {LG}, v1")
    SAC = 32
    def ofr(k): return 208 + 4*k if k < 12 else 64 + 4*(k-12)
    def oloads(c0, c1):
        for k in range(4*c0, 4*c1):
            e(f"buffer_load_dwordx4 {vr(ofr(k),4)}, v6, s[40:43], s{56+(k>>2)} offen offset:{(k&3)*1024} sc1")
    if cfg.get("oearly", 1): oloads(0, 3)
    for a in range(1, 4):
        for k in range(8): e(f"v_pk_add_f32 {vr(GACC+2*k,2)}, {vr(GACC+2*k,2)}, {vr(GACC+a*16+2*k,2)}")
    e(f"s_mov_b32 s60, {f2h(-math.log2(math.e))}")
    for k in range(16): e(f"v_mul_f32 v{SAC+k}, s60, v{GACC+k}")
    for k in range(16): e(f"v_exp_f32 v{SAC+k}, v{SAC+k}")
    for k in range(16): e(f"v_add_f32 v{SAC+k}, 1.0, v{SAC+k}")
    for k in range(16): e(f"v_rcp_f32 v{SAC+k}, v{SAC+k}")
    for k in range(16): e(f"v_mul_f32 v{GACC+k}, v{GACC+k}, v{SAC+k}")
    oloads(3 if cfg.get("oearly", 1) else 0, 4)
    e(f"s_mov_b32 s62, {SPIN}")
    for c in range(4):
        LC = e.new("ochk"); LR = e.new("oretry"); LG_ = e.new("ogo")
        e(f"{LC}:")
        e(f"s_waitcnt vmcnt({12 - 4*c})")
        b = ofr(4*c)
        e(f"v_max3_u32 v5, v{b}, v{b+1}, v{b+2}")
        for k in range(3, 15, 2): e(f"v_max3_u32 v5, v5, v{b+k}, v{b+k+1}")
        e(f"v_max_u32 v5, v5, v{b+15}\nv_cmp_eq_u32 vcc, -1, v5\ns_nop 4\ns_cbranch_vccnz {LR}")
        e(f"{LG_}:")
        if c == 3: stamp(e, 9)
        for k in range(4*c, 4*c+4):
            for ma in (1, 0):
                a = SAC + ma*16
                cc = "0" if k == 0 else vr(a,16)
                e(f"{MFMA} {vr(a,16)}, {vr(WO+k*8+ma*4,4)}, {vr(ofr(k),4)}, {cc}")
        e2 = Asm()
        e2(f"{LR}:\ns_sub_u32 s62, s62, 1\ns_cmp_le_i32 s62, 0\ns_cbranch_scc1 {LG_}")
        e2("s_waitcnt vmcnt(0)")
        for d in range(c, 4):
            LS = e.new("oskip")
            if d > c:
                b2 = ofr(4*d)
                e2(f"v_max3_u32 v5, v{b2}, v{b2+4}, v{b2+8}\nv_max_u32 v5, v5, v{b2+12}\nv_cmp_eq_u32 vcc, -1, v5\ns_nop 4\ns_cbranch_vccz {LS}")
            for k in range(4*d, 4*d+4):
                e2(f"buffer_load_dwordx4 {vr(ofr(k),4)}, v6, s[40:43], s{56+(k>>2)} offen offset:{(k&3)*1024} sc1")
            e2(f"{LS}:")
        e2(f"s_waitcnt vmcnt(0)\ns_branch {LC}")
        OOL.append(e2.text())
    stamp(e, 10)
    XF = 80
    e("s_mov_b32 s60, 0xffff0000")
    for k in range(5): e(f"v_lshlrev_b32 v{XF+2*k}, 16, v{8+k}\nv_and_b32 v{XF+1+2*k}, s60, v{8+k}")
    for q in range(4): e(f"ds_write_b128 v3, {vr(SAC+16+4*q,4)} offset:{q*1024}")
    for k in range(5, 8): e(f"v_lshlrev_b32 v{XF+2*k}, 16, v{8+k}\nv_and_b32 v{XF+1+2*k}, s60, v{8+k}")
    for k in range(8): e(f"v_pk_fma_f32 {vr(XF+2*k,2)}, {vr(SAC+2*k,2)}, {vr(GACC+2*k,2)}, {vr(XF+2*k,2)}")
    e("s_waitcnt lgkmcnt(0)\ns_barrier")
    for q in range(4): e(f"ds_read_b128 {vr(96+4*q,4)}, v1 offset:{q*1024}")
    for hf in range(2):
        e(f"s_waitcnt lgkmcnt({2 - 2*hf})")
        for k in range(4*hf, 4*hf+4): e(f"v_pk_fma_f32 {vr(XF+2*k,2)}, {vr(96+2*k,2)}, {vr(GACC+2*k,2)}, {vr(XF+2*k,2)}")
        for k in range(4*hf, 4*hf+4): e(f"v_cvt_pk_bf16_f32 v{112+k}, v{XF+2*k}, v{XF+2*k+1}")
        e("s_nop 1")
        e(f"v_permlane32_swap_b32 v{112+4*hf}, v{114+4*hf}\nv_permlane32_swap_b32 v{113+4*hf}, v{115+4*hf}")
        e(f"buffer_store_dwordx4 {vr(112+4*hf,4)}, v2, s[44:47], s55 offen offset:{32*hf}")

def build(cfg):
    global STAMP
    STAMP = cfg.get("stamp", 0)
    if cfg.get("ks"): KS.extend(int(x) for x in cfg["ks"].split("_"))
    e = Asm()
    hdr = open("cdna_kernels/" + NAME + ".s.ref").read().split("; Override launch")[0]
    kn = NAME + "_kernel"
    out = hdr
    if cfg.get("list"):
        out += f"; @launch kernel={kn} grid=(256,1,1) block=(512,1,1) lds=163840\n"
    else:
        out += "; @launch grid=(256,1,1) block=(512,1,1) lds=163840\n"
    out += '.amdgcn_target "amdgcn-amd-amdhsa--gfx950"\n.text\n'
    e(f".globl {kn}\n.p2align 8\n.type {kn},@function\n{kn}:")
    e("s_cmp_ge_u32 s2, 256\ns_cbranch_scc1 L_done")
    e("s_load_dwordx8 s[8:15], s[0:1], 0\ns_load_dwordx16 s[16:31], s[0:1], 32")
    e("v_lshrrev_b32 v1, 6, v0\nv_and_b32 v0, 63, v0\nv_readfirstlane_b32 s3, v1")
    if STAMP:
        for k in range(NST): e(f"s_mov_b32 s{80+k}, 0")
        stamp(e, 0)
    e("s_and_b32 s60, s2, 3\ns_lshl_b32 s60, s60, 3\ns_bfe_u32 s61, s2, 0x30003\ns_add_u32 s6, s60, s61")
    e("s_lshr_b32 s78, s2, 6\ns_lshr_b32 s79, s2, 7\ns_bfe_u32 s60, s2, 0x10002\ns_lshl_b32 s60, s60, 1\ns_and_b32 s61, s78, 1\ns_add_u32 s5, s60, s61")
    e("s_lshl_b32 s7, s79, 2\ns_add_u32 s7, s7, s5")
    startup_loads(e)
    e("s_cmp_ge_u32 s3, 4\ns_cbranch_scc1 L_compute")
    p1_helper(e, cfg)
    phase2_a(e, cfg)
    e("L_compute:")
    e("s_sub_u32 s48, s3, 4")
    p1_compute(e, cfg)
    phase2_g(e, cfg)
    e("L_end:")
    endpgm(e)
    e("L_done:")
    e("s_endpgm")
    for blk in OOL: e(blk)
    out += e.text()
    out += '.section .rodata,"a"\n' + kd(kn, 256, 102)
    return out

if __name__ == "__main__":
    cfg = {}
    dst = sys.argv[1] if len(sys.argv) > 1 else "cdna_kernels/" + NAME + ".s"
    for a in sys.argv[2:]:
        k, v = a.split("="); cfg[k] = int(v) if v.isdigit() else v
    open(dst, "w").write(build(cfg))
    print("wrote", dst)
```

```python
import sys, math
from asmlib import *

NAME = "recurrent_scan__grouped_kv_mqa__glu_gated_geglu__prompt"
WS_Q, WS_O, WS_KV, WS_H = 0, 0x200000, 0x400000, 0x500000
WS_F = 0x480000
WS_FKV, WS_FQ = 0x490000, 0x492000
sN = 4
WS_SIZE = 0x10000000
VG = 544; KT = 1024 + 2*VG
NCH = 64*KT // 1024
QSCALE = 0.25 * math.log2(math.e)
sX, sWQ, sWK, sWV, sWO, sWG, sWU, sWD, sOUT, sDBG, sWS = 8, 10, 12, 14, 16, 20, 22, 24, 26, 28, 30
MFMA = "v_mfma_f32_32x32x16_bf16"
SMF = "v_smfmac_f32_32x32x32_bf16"
STAMP = 0
WS_T = 0xF000000
SPIN = 1 << 17
NST = 16
XN = 0; WR = 65536; NSLOT = 5
MISC = WR + NSLOT*16384
CNT = 163840 - 16
LG = 64*KT
NEARLY = 10

KS = []
def stamp(e, idx, force=False):
    if KS and 4 <= idx <= 11 and not force: return
    if STAMP:
        e(f"{'s_memtime' if STAMP==2 else 's_memrealtime'} s[100:101]")
        e("s_waitcnt lgkmcnt(0)")
        e(f"s_mov_b32 s{80+idx}, s100")
def endpgm(e):
    if STAMP:
        stamp(e, 14)
        e("s_waitcnt vmcnt(0)")
        stamp(e, 15)
        e(f"s_lshl_b32 s60, s2, 9\ns_lshl_b32 s61, s3, 6\ns_add_u32 s60, s60, s61\ns_add_u32 s60, s60, {WS_T}")
        e("v_mov_b32 v1, 0")
        for k in range(NST):
            e(f"v_mov_b32 v2, s{80+k}\nbuffer_store_dword v2, v1, s[40:43], s60 offen offset:{4*k}\ns_nop 1")
    e("s_endpgm")

def poll(e, vaddr, soff, tmp=10, sleep=0, wide=False):
    L = e.new("poll"); D = e.new("polled")
    e(f"s_mov_b32 s62, {SPIN}")
    e(f"{L}:")
    if wide:
        e(f"buffer_load_dwordx4 v[{tmp}:{tmp+3}], v{vaddr}, s[40:43], {soff} offen sc1")
        e("s_waitcnt vmcnt(0)")
        chk2(e, tmp)
    else:
        e(f"buffer_load_dword v{tmp}, v{vaddr}, s[40:43], {soff} offen sc1")
        e("s_waitcnt vmcnt(0)")
        e(f"v_cmp_ne_u32 vcc, s{sN}, v{tmp}")
    e("s_sub_u32 s62, s62, 1\ns_cmp_lg_u32 s62, 0\ns_nop 2")
    e(f"s_cbranch_vccz {D}")
    if sleep: e(f"s_sleep {sleep}")
    e(f"s_cbranch_scc1 {L}")
    e(f"{D}:")
def chk2(e, tmp):
    for k in range(4): e(f"v_xor_b32 v{tmp+k}, s{sN}, v{tmp+k}")
    e(f"v_or3_b32 v{tmp}, v{tmp}, v{tmp+1}, v{tmp+2}\nv_or_b32 v{tmp}, v{tmp}, v{tmp+3}\nv_cmp_ne_u32 vcc, 0, v{tmp}")
OOL = []
def nonce_take(e, vn, vz, srdp):
    L = e.new("nspin"); D = e.new("ngot"); L2 = e.new("nloop")
    OOL.append(f"""{L}:
s_mov_b32 s62, {SPIN}
{L2}:
buffer_load_dword v{vn}, v{vz}, s[{srdp}:{srdp+3}], 0 offen sc1
s_waitcnt vmcnt(0)
v_readfirstlane_b32 s{sN}, v{vn}
s_sub_u32 s62, s62, 1
s_nop 3
s_cmp_lg_u32 s{sN}, 0
s_cbranch_scc1 {D}
s_sleep 2
s_cmp_lg_u32 s62, 0
s_cbranch_scc1 {L2}
s_branch {D}""")
    return f"v_readfirstlane_b32 s{sN}, v{vn}\ns_nop 3\ns_cmp_eq_u32 s{sN}, 0\ns_cbranch_scc1 {L}\n{D}:"
def flag_set(vd, vz, soff, wait=""):
    return f"v_mov_b32 v{vd}, s{sN}\nv_mov_b32 v{vz}, 0\ns_mov_b64 exec, 1\n{wait}\nbuffer_store_dword v{vd}, v{vz}, s[40:43], {soff} offen sc1\ns_mov_b64 exec, -1"

def lds_arrive(e, off, val, va=14, vv=15):
    e(f"v_mov_b32 v{va}, {CNT}\nv_mov_b32 v{vv}, {val}\ns_mov_b64 exec, 1")
    e(f"ds_add_u32 v{va}, v{vv} offset:{off}")
    e("s_mov_b64 exec, -1")
def lds_wait(e, off, mask, val, va=14, vv=15, ge=False):
    L = e.new("lw"); D = e.new("lwd")
    e(f"v_mov_b32 v{va}, {CNT}\ns_mov_b32 s62, {SPIN*8}")
    e(f"{L}:")
    e(f"ds_read_b32 v{vv}, v{va} offset:{off}\ns_waitcnt lgkmcnt(0)")
    e(f"v_readfirstlane_b32 s63, v{vv}\ns_sub_u32 s62, s62, 1\ns_nop 2")
    e(f"s_and_b32 s63, s63, {mask}\ns_cmp_{'ge' if ge else 'eq'}_u32 s63, {val}\ns_cbranch_scc1 {D}")
    if ge: e("s_sleep 2")
    e(f"s_cmp_lg_u32 s62, 0\ns_cbranch_scc1 {L}")
    e(f"{D}:")


X = 64
def startup_loads(e):
    e("v_lshrrev_b32 v1, 3, v0\nv_and_b32 v2, 7, v0")
    e("s_lshl_b32 s60, s6, 6\ns_lshl_b32 s61, s3, 3\ns_add_u32 s60, s60, s61")
    e("v_add_u32 v3, s60, v1\nv_lshlrev_b32 v3, 10, v3\nv_lshl_add_u32 v3, v2, 4, v3")
    e("s_lshl_b32 s61, s78, 8")
    for c in range(8):
        e(f"s_add_u32 s60, s61, {c*128}\ns_and_b32 s{64+c}, s60, 0x380")
    e("s_waitcnt lgkmcnt(0)")
    srd(e, 32, sX, 2097152)
    for c in range(8):
        e(f"buffer_load_dwordx4 {vr(X+4*c,4)}, v3, s[32:35], s{64+c} offen")
    srd(e, 40, sWS, WS_SIZE)

def startup_norm(e, extra, nextra_before):
    e("s_and_b32 s60, s3, 1\ns_lshl_b32 s60, s60, 2\ns_lshl_b32 s61, s3, 10")
    e("v_lshrrev_b32 v5, 1, v1\nv_or_b32 v5, s60, v5\nv_xor_b32 v5, v5, v2\nv_lshlrev_b32 v5, 4, v5\nv_lshl_add_u32 v5, v1, 7, v5\nv_add_u32 v5, s61, v5")
    e("s_lshl_b32 s61, s6, 7")
    for c in range(8):
        e(f"s_sub_u32 s60, s{64+c}, s61\ns_and_b32 s60, s60, 0x380\ns_lshl_b32 s60, s60, 6\nv_add_u32 v{40+c}, s60, v5")
    e("s_mov_b32 s59, 0xffff0000\ns_mov_b32 s75, 0x3f803f80")
    e(f"s_mov_b32 s76, {f2h(1/512)}\ns_mov_b32 s77, {f2h(1e-5)}")
    e("v_mov_b32 v8, 0\nv_mov_b32 v9, 0")
    issued = 8 + nextra_before
    def pop():
        nonlocal issued
        if extra:
            extra.pop(0)(); issued += 1
    for c in range(8):
        e(f"s_waitcnt vmcnt({issued - c - 1})")
        if c == 0: stamp(e, 12)
        for k in range(4):
            e(f"v_dot2c_f32_bf16 v8, s75, v{X+4*c+k}")
            e(f"v_dot2c_f32_bf16 v9, v{X+4*c+k}, v{X+4*c+k}")
        if c >= 4: pop()
    e("s_nop 2")
    for dpp in ("quad_perm:[1,0,3,2]", "quad_perm:[2,3,0,1]", "row_half_mirror"):
        e(f"v_add_f32_dpp v8, v8, v8 {dpp} row_mask:0xf bank_mask:0xf")
        e(f"v_add_f32_dpp v9, v9, v9 {dpp} row_mask:0xf bank_mask:0xf")
        e("s_nop 0")
    e("v_mul_f32 v8, s76, v8\nv_mul_f32 v10, v8, v8\nv_fma_f32 v10, v9, s76, -v10\nv_max_f32 v10, 0, v10\nv_add_f32 v10, s77, v10")
    e("v_rsq_f32 v16, v10\ns_nop 0\nv_mul_f32 v18, v8, v16\nv_mov_b32 v17, v16\nv_sub_f32 v18, 0, v18\nv_mov_b32 v19, v18")
    for c in range(8):
        b = X + 4*c
        for k in range(4): e(f"v_lshlrev_b32 v{32+2*k}, 16, v{b+k}\nv_and_b32 v{33+2*k}, s59, v{b+k}")
        pop()
        for k in range(4): e(f"v_pk_fma_f32 v[{32+2*k}:{33+2*k}], v[{32+2*k}:{33+2*k}], v[16:17], v[18:19]")
        for k in range(4): e(f"v_cvt_pk_bf16_f32 v{b+k}, v{32+2*k}, v{33+2*k}")
        e(f"ds_write_b128 v{40+c}, {vr(b,4)}")
        pop()
    while extra: pop()

AREG = (16, 32, 48, 64, 80, 96, 112, 116)
KB = [120, 124]; V1 = [128, 132]; V2 = [136, 140]
def early(e, q0, q1):
    for q in range(q0, q1):
        if q % 4 == 0:
            e(f"s_mov_b32 m0, s64\ns_add_u32 s61, s64, {WS_KV}")
        e(f"buffer_load_dwordx4 v6, s[40:43], s61 offen offset:{(q&3)*1024} sc1 lds")
        if q % 4 == 3: e("s_add_u32 s64, s64, 4096")

def p1_helper(e, cfg):
    PRE = cfg.get("pre", 4)
    e(f"s_setprio {cfg.get('hprio0', 1)}")
    e("s_lshr_b32 s62, s3, 1       ; mat\ns_and_b32 s63, s3, 1")
    e("s_cmp_eq_u32 s62, 0")
    e(f"s_cselect_b32 s44, s{sWG}, s{sWU}\ns_cselect_b32 s45, s{sWG+1}, s{sWU+1}\ns_mov_b32 s46, 1835008\ns_mov_b32 s47, 0x00020000")
    e("s_mov_b32 s73, 1792")
    e("s_lshl_b32 s60, s62, 2")
    e("v_and_b32 v4, 2, v1\nv_or_b32 v4, s60, v4\nv_xor_b32 v4, v4, v2\nv_lshlrev_b32 v4, 4, v4")
    e("s_mul_i32 s60, s5, 7\ns_add_u32 s60, s60, s63\ns_lshl_b32 s61, s79, 2\ns_add_u32 s61, s61, s60\ns_add_u32 s61, s61, 1      ; H1")
    e("s_lshl_b32 s61, s61, 7\nv_mul_u32_u24 v6, 3584, v1\nv_add3_u32 v52, v6, v4, s61")
    for q in range(1, 4): e(f"v_add_u32 v{52+q}, {q*(8*3584-1024)}, v52")
    e("s_cmp_gt_u32 s63, s79\ns_cbranch_scc1 L_hq")
    e("s_mov_b32 s36, s44\ns_mov_b32 s37, s45\ns_mov_b32 s38, 1835008\ns_mov_b32 s72, 1792")
    e("s_add_u32 s60, s79, 1\ns_lshl_b32 s60, s60, 7")
    for q in range(4): e(f"v_subrev_u32 v{48+q}, s60, v{52+q}")
    e("s_branch L_hw")
    e("L_hq:")
    e(f"s_mov_b32 s36, s{sWQ}\ns_mov_b32 s37, s{sWQ+1}\ns_mov_b32 s38, 524288\ns_mov_b32 s72, 512")
    e("s_lshl_b32 s60, s5, 8\ns_lshl_b32 s61, s62, 7\ns_add_u32 s60, s60, s61")
    e("v_lshlrev_b32 v6, 10, v1\nv_add3_u32 v48, v6, v4, s60")
    for q in range(1, 4): e(f"v_add_u32 v{48+q}, {q*(8*1024-1024)}, v48")
    e("L_hw:")
    e("s_mov_b32 s39, 0x00020000")
    e(f"s_lshl_b32 s58, s3, 12\ns_add_u32 s58, s58, {WR}")
    e("s_lshl_b32 s57, s6, 7\ns_and_b32 s57, s57, 0x380")
    def wdma1(st, q):
        p = st >> 4
        if q == 0:
            e(f"s_add_u32 m0, s58, {(st % NSLOT)*16384}")
            e(f"s_mul_i32 s56, s57, s{72+p}")
        e(f"buffer_load_dwordx4 v{48+4*p+q}, s[{36+8*p}:{39+8*p}], s56 offen offset:{q*1024} lds")
        if q == 3:
            e("s_add_u32 s57, s57, 64\ns_and_b32 s57, s57, 0x3c0")
    extra = [(lambda st=st, q=q: wdma1(st, q)) for st in range(PRE) for q in range(4)]
    startup_norm(e, extra, 0)
    stamp(e, 1)
    e(f"s_setprio {cfg.get('hprio1', 0)}")
    def interval_head(T, nxt, extra_out=0):
        e(f"s_waitcnt vmcnt({4*(nxt - T - 1) + extra_out})")
        e("s_barrier")
    SA, SB, CA, CB, OA, OB, QA, QB = AREG
    nxt = PRE
    setup = [f"s_mov_b32 s68, s{sDBG}", f"s_mov_b32 s69, s{sDBG+1}", "s_mov_b32 s70, 256", "s_mov_b32 s71, 0x00020000",
             "v_mov_b32 v7, 0", "v_lshlrev_b32 v6, 4, v0", "v_lshrrev_b32 v12, 1, v0", "v_and_b32 v13, 1, v0", "v_lshlrev_b32 v12, 7, v12", "v_lshl_add_u32 v12, v13, 4, v12"]
    setup += "s_lshl_b32 s50, s6, 1\ns_and_b32 s61, s3, 1\ns_add_u32 s50, s50, s61\ns_lshl_b32 s50, s50, 5\ns_lshl_b32 s61, s7, 2\ns_add_u32 s50, s50, s61\ns_and_b32 s61, s3, 2\ns_add_u32 s50, s50, s61\ns_lshl_b32 s50, s50, 10".split("\n")
    setup += [f"s_mul_i32 s64, s3, {NEARLY*1024}", f"s_mov_b32 s66, {WS_FKV}", f"s_mov_b32 s67, {WS_KV}"]
    setup += f"s_lshl_b32 s65, s6, 7\ns_and_b32 s60, s7, 6\ns_lshr_b32 s61, s3, 1\ns_add_u32 s60, s60, s61\ns_lshl_b32 s60, s60, 2\ns_add_u32 s65, s65, s60\ns_add_u32 s65, s65, {WS_FQ}".split("\n")
    setup += ["v_and_b32 v8, 31, v0", "v_lshrrev_b32 v14, 5, v0", "v_lshlrev_b32 v14, 8, v14", "v_lshl_add_u32 v14, v8, 4, v14",
              "v_and_b32 v15, 27, v8", "v_cmp_eq_u32 vcc, 16, v15", "v_mov_b32 v15, 528", "v_mov_b32 v13, 512", "v_cndmask_b32 v15, v15, v13, vcc",
              "v_cmp_gt_u32 vcc, 16, v8", "v_mov_b32 v2, 0xdddddddd", "s_mov_b32 s51, 0", "v_cndmask_b32 v5, v15, v14, vcc", "v_add_u32 v5, 1024, v5"]
    setup += [f"v_mov_b32 v{OA+k}, 0" for k in range(32)]
    e("s_waitcnt lgkmcnt(0)")
    for T in range(28):
        interval_head(T, nxt)
        cnt = 0
        while nxt < min(32, T + NSLOT) and cnt < 2:
            for q in range(4):
                wdma1(nxt, q)
                if T >= 2 and q < 3:
                    for _ in range(2):
                        if setup: e(setup.pop(0))
            nxt += 1; cnt += 1
    assert not setup and nxt == 32
    e("buffer_load_dword v9, v7, s[68:71], 0 offen sc1")
    e("buffer_load_dwordx4 v[16:19], v12, s[40:43], s66 offen sc1")
    interval_head(28, 32, 2)
    e("buffer_load_dword v10, v7, s[40:43], s65 offen sc1")
    for T in range(29, 31): interval_head(T, 32, 3)
    e("s_waitcnt vmcnt(0)")
    e(nonce_take(e, 9, 7, 68))
    chk2(e, 16)
    e("s_mov_b32 s53, 1\ns_nop 3\ns_cbranch_vccz L_hkvok")
    e("s_barrier        ; B31")
    poll(e, 12, "s66", tmp=16, sleep=4, wide=True)
    e("s_mov_b32 s53, 0")
    e("L_hkvok:")
    e(f"v_cmp_ne_u32 vcc, s{sN}, v10")
    e(f"buffer_load_dwordx4 {vr(KB[0],4)}, v6, s[40:43], s67 offen sc1")
    e("s_nop 2\ns_cbranch_vccnz L_hqlate")
    e(f"buffer_load_dwordx4 {vr(QA,4)}, v6, s[40:43], s50 offen sc1")
    e(f"buffer_load_dwordx4 {vr(QB,4)}, v6, s[40:43], s50 offen offset:1024 sc1")
    e("s_cmp_eq_u32 s53, 0\ns_cbranch_scc1 L_hq1\ns_barrier        ; B31\nL_hq1:")
    early(e, 0, NEARLY)
    e(f"s_waitcnt vmcnt({NEARLY})\ns_branch L_hend")
    e("L_hqlate:")
    e("s_cmp_eq_u32 s53, 0\ns_cbranch_scc1 L_hq2\ns_barrier        ; B31\nL_hq2:")
    early(e, 0, NEARLY)
    poll(e, 7, "s65", sleep=1)
    stamp(e, 3)
    e(f"buffer_load_dwordx4 {vr(QA,4)}, v6, s[40:43], s50 offen sc1")
    e(f"buffer_load_dwordx4 {vr(QB,4)}, v6, s[40:43], s50 offen offset:1024 sc1")
    e("s_waitcnt vmcnt(0)")
    e("L_hend:")
    stamp(e, 2)

def p1_compute(e, cfg):
    FB = 192
    def acc(p, ti, gi): return 64 + p*64 + (ti*2 + gi)*16
    def fb(b, ti): return FB + b*16 + ti*4
    def fa(b, gi): return FB + b*16 + 8 + gi*4
    e("s_or_b32 s60, s2, s48\ns_cmp_lg_u32 s60, 0\ns_cbranch_scc1 L_nononce")
    e("s_memrealtime s[62:63]\ns_waitcnt lgkmcnt(0)")
    srd(e, 44, sDBG, 256)
    e("s_mul_i32 s62, s62, 0x9e3779b1\ns_or_b32 s62, s62, 1\nv_mov_b32 v16, s62\nv_mov_b32 v17, 0\ns_mov_b64 exec, 1")
    e("buffer_store_dword v16, v17, s[44:47], 0 offen sc1\ns_mov_b64 exec, -1")
    e("L_nononce:")
    e("v_lshlrev_b32 v62, 4, v0")
    e("s_cmp_eq_u32 s79, 0\ns_cbranch_scc1 L_nokvdma")
    e("s_bitcmp1_b32 s7, 1")
    e(f"s_cselect_b32 s44, s{sWV}, s{sWK}\ns_cselect_b32 s45, s{sWV+1}, s{sWK+1}\ns_mov_b32 s46, 16384\ns_mov_b32 s47, 0x00020000")
    e("s_lshl_b32 s60, s48, 12\ns_lshl_b32 s62, s6, 11\ns_add_u32 s60, s60, s62")
    e(f"s_lshl_b32 s61, s48, 12\ns_add_u32 s61, s61, {MISC}")
    for q in range(4):
        e(f"s_add_u32 m0, s61, {q*1024}\ns_and_b32 s60, s60, 16383")
        e("buffer_load_dwordx4 v62, s[44:47], s60 offen lds")
        e("s_add_u32 s60, s60, 1024")
    startup_norm(e, [], 4)
    e("s_waitcnt vmcnt(0)\ns_branch L_cnorm")
    e("L_nokvdma:")
    startup_norm(e, [], 0)
    e("L_cnorm:")
    srd(e, 44, sDBG, 256)
    e("v_mov_b32 v60, 0")
    e("v_and_b32 v10, 31, v0\nv_lshrrev_b32 v11, 5, v0\nv_bfe_u32 v12, v0, 1, 3\nv_xor_b32 v12, v12, v11\nv_lshlrev_b32 v12, 4, v12")
    e("v_lshl_add_u32 v2, v10, 7, v12\nv_xor_b32 v3, 32, v2\nv_xor_b32 v4, 64, v2\nv_xor_b32 v5, 96, v2")
    e("v_bfe_u32 v12, v0, 4, 1\nv_bfe_u32 v13, v0, 2, 2\nv_and_b32 v14, 3, v0")
    e("s_and_b32 s50, s48, 1\ns_lshl_b32 s50, s50, 1      ; group base\ns_lshr_b32 s49, s48, 1")
    e(f"s_lshl_b32 s61, s49, 12\ns_add_u32 s61, s61, {WR}")
    e("v_lshrrev_b32 v15, 1, v13\nv_lshl_or_b32 v15, v12, 1, v15\nv_xor_b32 v15, s50, v15\nv_lshlrev_b32 v15, 5, v15")
    e("v_lshl_add_u32 v15, v14, 3, v15\nv_lshl_add_u32 v15, v13, 7, v15\nv_lshl_add_u32 v15, v11, 10, v15\nv_lshl_add_u32 v15, v12, 13, v15")
    e("v_add_u32 v6, s61, v15\nv_xor_b32 v7, 32, v6\nv_add_u32 v8, 49152, v6\nv_add_u32 v9, 49152, v7")
    GA = -2*math.sqrt(2/math.pi)*math.log2(math.e); GB = GA*0.044715
    e(f"v_mov_b32 v10, {f2h(GA)}\nv_mov_b32 v11, {f2h(GA)}\nv_mov_b32 v12, {f2h(GB)}\nv_mov_b32 v13, {f2h(GB)}\nv_mov_b32 v56, 1.0\nv_mov_b32 v57, 1.0")
    e("s_mul_i32 s60, s5, 7\ns_add_u32 s60, s60, s49\ns_lshl_b32 s61, s79, 2\ns_add_u32 s60, s60, s61\ns_add_u32 s60, s60, 1     ; H1")
    e(f"s_lshl_b32 s60, s60, 2\ns_add_u32 s60, s60, s50\ns_mul_i32 s61, s6, 224\ns_add_u32 s60, s60, s61\ns_lshl_b32 s60, s60, 10\ns_add_u32 s52, s60, {WS_H}")
    e(f"s_add_u32 s53, s52, {112*1024}\ns_add_u32 s60, s79, 1\ns_lshl_b32 s60, s60, 12\ns_sub_u32 s54, s52, s60\ns_sub_u32 s55, s53, s60")
    e("s_setprio 1")
    def reads(s):
        b = s % 3; T = s >> 1; slot = T % NSLOT
        a = [[f"ds_read_b64_tr_b16 {vr(fa(b,gi)+2*tp,2)}, v{6+gi+2*(slot//3)} offset:{(slot%3)*16384 + (s&1)*2048 + tp*512}" for tp in range(2)] for gi in range(2)]
        x = [f"ds_read_b128 {vr(fb(b,ti),4)}, v{2+(s&3)} offset:{((s>>2)&7)*8192 + ti*4096}" for ti in range(2)]
        return a, x
    def cost(o):
        return sum(8 if l.startswith(("v_exp", "v_rcp")) else 4 for l in o.split("\n"))
    def take(ops, budget, s=99):
        out = []
        while ops:
            o = ops[0]
            if isinstance(o, tuple):
                if s < o[0]: break
                o = o[1]
            if cost(o) > budget and (out or cost(o) <= 24): break
            budget -= cost(o); out.append(o); ops.pop(0)
        return out
    KVACC = 128
    def kvb(b, u): return 144 + b*16 + u*8
    def kvreads(s):
        b = s % 3; out = []
        for u in range(2):
            out += [f"ds_read_b128 {vr(kvb(b,u),4)}, v{20+u} offset:{s*8192}"]
            out += [f"ds_read_b64_tr_b16 {vr(kvb(b,u)+4+2*tp,2)}, v24 offset:{s*2048 + u*1024 + tp*128}" for tp in range(2)]
        return out
    def kstep(s, fill, kv=None):
        if s in KS: stamp(e, 4 + KS.index(s), True)
        b = s % 3; p = s >> 5
        nrd = 0
        bar = s + 2 < 64 and s % 2 == 0
        sched = {0: [], 1: [], 2: [], 3: []}
        if s + 2 < 64:
            a, x = reads(s+2); nrd = 6
            if bar: sched = {0: [], 1: a[0], 2: a[1], 3: x}
            else: sched = {0: a[0], 1: a[1], 2: x, 3: []}
        if kv is not None and s < 8:
            kr = kvreads(s+2) if s + 2 < 8 else []
            nrd += len(kr)
            for u in range(2):
                cc = "0" if s == 0 and u == 0 else vr(KVACC,4)
                a_, b_ = (kvb(b,u)+4, kvb(b,u)) if kv == "K" else (kvb(b,u), kvb(b,u)+4)
                e(f"v_mfma_f32_16x16x32_bf16 {vr(KVACC,4)}, {vr(a_,4)}, {vr(b_,4)}, {cc}")
                if kr: e(kr[u])
            if kr:
                if bar:
                    for k in range(3): sched[1+k] = sched[1+k] + [kr[2+k]]
                    sched[3] = sched[3] + [kr[5]]
                else:
                    for k in range(3): sched[k] = sched[k] + [kr[2+k]]
                    sched[2] = sched[2] + [kr[5]]
        mi = 0
        for ti in range(2):
            for gi in range(2):
                cc = "0" if (s & 31) == 0 else vr(acc(p,ti,gi),16)
                e(f"{MFMA} {vr(acc(p,ti,gi),16)}, {vr(fa(b,gi),4)}, {vr(fb(b,ti),4)}, {cc}")
                if bar and mi == 1:
                    e("s_waitcnt lgkmcnt(0)")
                    e("s_barrier")
                if mi == 3 and not bar and s + 1 < 64:
                    e(f"s_waitcnt lgkmcnt({nrd})")
                for r in sched[mi]: e(r)
                budget = cfg.get("b0", 24) - cfg.get("brd", 6)*len(sched[mi]) - (4 if (bar and mi == 1) else 0)
                for o in fill(mi, budget): e(o)
                mi += 1
    SK1 = cfg.get("skpub", 24)
    OP = 16
    def common(s):
        if s == 1: return ["buffer_load_dword v61, v60, s[44:47], 0 offen sc1"]
        if s == 13: return ["s_waitcnt vmcnt(%d)", nonce_take(e, 61, 60, 44)]
        if s == 29: return [f"v_mov_b32 v58, {CNT}\nv_mov_b32 v16, 0\nv_mov_b32 v17, 0\nv_mov_b32 v18, 0\nv_mov_b32 v19, 0\ns_mov_b64 exec, 1\nds_write_b128 v58, v[16:19]\ns_mov_b64 exec, -1"]
        return []
    def first_steps(kv):
        e("s_waitcnt lgkmcnt(0)")
        e("s_barrier")
        stamp(e, 1)
        for s in range(2):
            a, x = reads(s)
            for r in (kvreads(s) if kv else []) + a[0] + [x[0]] + a[1] + [x[1]]: e(r)
        e(f"s_waitcnt lgkmcnt({12 if kv else 6})")
        post = []
        if kv:
            post = [f"v_cvt_pk_bf16_f32 v{KVACC+4}, v{KVACC}, v{KVACC+1}", f"v_cvt_pk_bf16_f32 v{KVACC+5}, v{KVACC+2}, v{KVACC+3}",
                    f"buffer_store_dwordx2 {vr(KVACC+4,2)}, v25, s[40:43], s61 offen sc1"]
            if kv == "V":
                post += ["v_cmp_eq_u32 vcc, 0, v0", "v_mov_b32 v30, 0x3f803f80", "s_nop 0"]
                post += [f"v_cndmask_b32 v{KVACC+8+k}, 0, v30, vcc" for k in range(4)]
                post += [f"s_mov_b64 exec, 3\nbuffer_store_dwordx4 {vr(KVACC+8,4)}, v62, s[40:43], s61 offen offset:512 sc1\ns_mov_b64 exec, -1"]
        nst = (0 if not kv else 1 if kv == "K" else 2)
        for s in range(SK1):
            def f(mi, budget):
                if mi == 3 and s in (1, 13):
                    if s == 13: assert not post
                    return [x % nst if "%d" in x else x for x in common(s)]
                if kv and s == SK1 - 1 and mi == 3:
                    return [flag_set(30, 31, "s60", "s_waitcnt vmcnt(0)")]
                if s >= 8 and (s > 8 or mi > 0): return take(post, budget)
                return []
            kstep(s, f, kv)
    e(f"s_lshl_b32 s74, s6, 1\ns_and_b32 s61, s48, 1\ns_add_u32 s74, s74, s61\ns_lshl_b32 s74, s74, 5\ns_lshl_b32 s61, s7, 2\ns_add_u32 s74, s74, s61\ns_and_b32 s61, s48, 2\ns_add_u32 s74, s74, s61\ns_lshl_b32 s74, s74, 10\ns_add_u32 s74, s74, {WS_O}")
    e("s_cmp_gt_u32 s79, s49\ns_cbranch_scc1 L_ckv")
    first_steps(None)
    e("L_kvjoin:")
    for s in range(SK1, 32): kstep(s, lambda mi, budget: common(s) if mi == 3 and s % 2 == 1 else [])
    stamp(e, 13)
    e("s_cmp_gt_u32 s49, s79\ns_cbranch_scc1 L_p1q")
    def gelu_ops(p, ti, gi, pk):
        a = acc(p, ti, gi); T = 16 + ((ti*2+gi) & 1)*8*0; o = 24 + p*16 + (ti*2+gi)*4
        ops = []
        P = lambda x: vr(x, 2)
        if pk:
            ops += [f"v_pk_mul_f32 {P(T+2*k)}, {P(a+2*k)}, {P(a+2*k)}" for k in range(4)]
            ops += [f"v_pk_fma_f32 {P(T+2*k)}, {P(T+2*k)}, v[12:13], v[10:11]" for k in range(4)]
            ops += [f"v_pk_mul_f32 {P(T+2*k)}, {P(T+2*k)}, {P(a+2*k)}" for k in range(4)]
            for k in range(4):
                ops += [f"v_exp_f32 v{T+2*k}, v{T+2*k}", f"v_exp_f32 v{T+2*k+1}, v{T+2*k+1}", f"v_pk_mul_f32 {P(a+2*k)}, {P(a+2*k)}, {P(a+8+2*k)}"]
            ops += [f"v_pk_add_f32 {P(T+2*k)}, {P(T+2*k)}, v[56:57]" for k in range(4)]
            ops += [f"v_rcp_f32 v{T+k}, v{T+k}" for k in range(8)]
            ops += [f"v_pk_mul_f32 {P(a+2*k)}, {P(a+2*k)}, {P(T+2*k)}" for k in range(4)]
        else:
            ops += [f"v_mul_f32 v{T+k}, v{a+k}, v{a+k}" for k in range(8)]
            ops += [f"v_fma_f32 v{T+k}, v{T+k}, v12, v10" for k in range(8)]
            ops += [f"v_mul_f32 v{T+k}, v{T+k}, v{a+k}" for k in range(8)]
            for k in range(8):
                ops += [f"v_exp_f32 v{T+k}, v{T+k}", f"v_mul_f32 v{a+k}, v{a+k}, v{a+8+k}"]
            ops.append(f"v_add_f32 v{T}, 1.0, v{T}")
            for k in range(8):
                if k < 7: ops.append(f"v_add_f32 v{T+k+1}, 1.0, v{T+k+1}")
                ops.append(f"v_rcp_f32 v{T+k}, v{T+k}")
            ops += [f"v_mul_f32 v{a+k}, v{a+k}, v{T+k}" for k in range(8)]
        ops += [f"v_cvt_pk_bf16_f32 v{o+k}, v{a+2*k}, v{a+2*k+1}" for k in range(4)]
        ops.append(f"buffer_store_dwordx4 {vr(o,4)}, v62, s[40:43], s{(54 if p == 0 else 52)+ti} offen offset:{gi*1024} sc1")
        return ops
    def q_ops(ti, gi):
        a = acc(0, ti, gi); o = 24 + ((ti*2+gi) & 1)*8
        ops = []
        for hh in range(2):
            ops += [f"v_mul_f32 v{a+8*hh+k}, s58, v{a+8*hh+k}" for k in range(8)]
            ops += [f"v_cvt_pk_bf16_f32 v{o+4*hh+k}, v{a+8*hh+2*k}, v{a+8*hh+2*k+1}" for k in range(4)]
            ops.append(f"buffer_store_dwordx4 {vr(o+4*hh,4)}, v62, s[40:43], s{54+2*hh+ti} offen offset:{gi*1024} sc1")
        return ops
    def pass1(ops, extra, qcu):
        for s in range(32, 64):
            def fill(mi, budget):
                if s < 33: return []
                return take(ops, budget + extra, s)
            kstep(s, fill)
            if qcu and s == cfg.get("sqpub", 48):
                assert not ops
                e(flag_set(58, 59, "s51", "s_waitcnt vmcnt(0)"))
            if s == 62: lds_arrive(e, 0, 16, va=58, vv=59)
        for o in ops: e(o[1] if isinstance(o, tuple) else o)
        print("left ops", len(ops))
    tiles = [(ti, gi) for ti in range(2) for gi in range(2)]
    gl = [gelu_ops(0, ti, gi, False) for ti, gi in tiles]
    ops0 = sum((x[:-1] for x in gl), [])
    pass1(ops0, 0, False)
    e("s_branch L_p1e")
    e("L_ckv:")
    e("v_and_b32 v26, 15, v0\nv_lshrrev_b32 v27, 4, v0\nv_bfe_u32 v28, v0, 1, 3\nv_xor_b32 v28, v28, v27\nv_lshlrev_b32 v28, 4, v28\nv_lshl_add_u32 v28, v26, 7, v28")
    e("s_and_b32 s62, s7, 1\ns_lshl_b32 s60, s62, 12\ns_lshl_b32 s61, s48, 11\ns_add_u32 s60, s60, s61\nv_add_u32 v20, s60, v28\nv_xor_b32 v21, 64, v20")
    e(f"v_lshlrev_b32 v24, 3, v26\nv_lshl_add_u32 v24, v27, 8, v24\nv_add_u32 v24, {MISC}, v24")
    e(f"s_lshl_b32 s61, s6, 1\ns_add_u32 s61, s61, s62\ns_mul_i32 s61, s61, {KT}\ns_add_u32 s61, s61, {WS_KV}")
    e(f"s_lshl_b32 s60, s6, 7\ns_lshl_b32 s62, s5, 3\ns_add_u32 s60, s60, s62\ns_lshl_b32 s62, s48, 2\ns_add_u32 s60, s60, s62\ns_add_u32 s60, s60, {WS_FKV}")
    e("v_lshlrev_b32 v25, 4, v26\nv_and_b32 v28, 1, v27\nv_lshrrev_b32 v29, 1, v27")
    e("s_bitcmp1_b32 s7, 1\ns_cbranch_scc1 L_cv")
    e("v_lshl_add_u32 v25, v28, 9, v25\nv_lshl_add_u32 v25, v29, 3, v25\ns_lshl_b32 s62, s48, 8\ns_add_u32 s61, s61, s62")
    first_steps("K")
    e("s_branch L_kvjoin")
    e("L_cv:")
    e(f"v_lshl_add_u32 v25, v29, 8, v25\nv_lshl_add_u32 v25, v28, 3, v25\ns_mul_i32 s62, s48, {VG}\ns_add_u32 s61, s61, s62\ns_add_u32 s61, s61, 1024")
    first_steps("V")
    e("s_branch L_kvjoin")
    e("L_p1q:")
    e(f"s_mov_b32 s58, {f2h(QSCALE)}")
    e("s_lshl_b32 s60, s6, 6\ns_lshl_b32 s61, s5, 3\ns_add_u32 s60, s60, s61\ns_add_u32 s60, s60, s50\ns_lshl_b32 s54, s60, 10\ns_add_u32 s55, s54, 32768")
    e("s_add_u32 s56, s54, 4096\ns_add_u32 s57, s55, 4096")
    e(f"s_lshl_b32 s51, s6, 7\ns_lshl_b32 s60, s5, 3\ns_add_u32 s51, s51, s60\ns_lshl_b32 s60, s50, 1\ns_add_u32 s51, s51, s60\ns_add_u32 s51, s51, {WS_FQ}")
    pass1(sum((q_ops(ti, gi) for ti, gi in tiles), []), cfg.get("qextra", 0), True)
    e("L_p1e:")
    stamp(e, 2)
    e("s_setprio 2\ns_nop 7")
    for ti, gi in tiles:
        for o in gelu_ops(1, ti, gi, True)[:-1]: e(o)
    stamp(e, 3)
    e("s_mov_b32 s72, s52\ns_mov_b32 s73, s53\ns_mov_b32 s75, s54\ns_mov_b32 s76, s55\ns_cmp_gt_u32 s49, s79\ns_cselect_b32 s77, 1, 0")

def phase2_a(e, cfg):
    U = 8
    OFF = float(cfg.get("off", 96))
    SA, SB, CA, CB, OA, OB, QA, QB = AREG
    e(f"s_setprio {cfg.get('aprio0', 3)}")
    e(f"{MFMA} {vr(SA,16)}, {vr(KB[0],4)}, {vr(QA,4)}, 0")
    e(f"{MFMA} {vr(SB,16)}, {vr(KB[0],4)}, {vr(QB,4)}, 0")
    e("s_nop 10")
    def maxtree(S, d, first):
        if first:
            e(f"v_max3_f32 v{d}, v{S}, v{S+1}, v{S+2}")
            for k in range(3, 15, 2): e(f"v_max3_f32 v{d}, v{d}, v{S+k}, v{S+k+1}")
            e(f"v_max_f32 v{d}, v{d}, v{S+15}")
        else:
            for k in range(0, 16, 2): e(f"v_max3_f32 v{d}, v{d}, v{S+k}, v{S+k+1}")
    maxtree(SA, 8, True); maxtree(SB, 9, True)
    e(f"s_mov_b32 s52, {f2h(-OFF)}")
    e("L_setmax:")
    e("v_mov_b32 v10, v8\nv_mov_b32 v11, v9\nv_mov_b32 v3, v6\nv_mov_b32 v4, v5\nv_permlane32_swap_b32 v8, v10\nv_permlane32_swap_b32 v9, v11\ns_nop 0")
    e("v_max_f32 v8, v8, v10\nv_max_f32 v9, v9, v11\nv_sub_f32 v8, s52, v8\nv_sub_f32 v9, s52, v9")
    e("v_mov_b32 v10, v9\nv_mov_b32 v11, v9\nv_mov_b32 v9, v8")
    for k in range(8): e(f"v_mov_b64 {vr(CA+2*k,2)}, v[8:9]")
    for k in range(8): e(f"v_mov_b64 {vr(CB+2*k,2)}, v[10:11]")
    e(f"{MFMA} {vr(SA,16)}, {vr(KB[0],4)}, {vr(QA,4)}, {vr(CA,16)}")
    for k in range(4): e(f"v_mov_b64 {vr(SB+8+2*k,2)}, 0")
    for k in range(2): e(f"v_mov_b64 {vr(V2[1]+2*k,2)}, 0")
    e("s_cmp_lg_u32 s51, 0\ns_cbranch_scc1 L_nosync")
    e("s_setprio 0\ns_waitcnt vmcnt(0)")
    lds_arrive(e, 0, 1)
    stamp(e, 5)
    lds_wait(e, 0, 15, 4)
    e(f"s_setprio {cfg.get('aprio', 1)}")
    e("L_nosync:")
    e(f"ds_read_b128 {vr(V1[0],4)}, v4")
    e(f"ds_read_b128 {vr(V2[0],4)}, v4 offset:{VG}")
    e(f"ds_read_b128 {vr(KB[1],4)}, v3 offset:{KT}")
    e(f"ds_read_b128 {vr(V1[1],4)}, v4 offset:{KT}")
    e("s_waitcnt lgkmcnt(3)")
    n1 = 2
    assert (n1*U + 2)*KT <= 4*NEARLY*1024
    e(f"s_cmp_eq_u32 s51, 0\ns_cselect_b32 s53, {n1}, {64//U}")
    stamp(e, 6)
    e(".p2align 3")
    e("L_loop:")
    def ex(S, ks):
        for k in ks: e(f"v_exp_f32 v{S+k}, v{S+k}")
    sched = cfg.get("asched", "base")
    Y = cfg.get("yield", "")
    ys = [int(x) for x in str(Y).split("_")] if Y != "" else []
    def exy(S, ks):
        for k in ks:
            e(f"v_exp_f32 v{S+k}, v{S+k}")
            if k in ys: e("s_nop 0")
    for u in range(U):
        b = u & 1
        if sched == "base":
            exy(SA, [0, 1])
            e(f"{SMF} {vr(OB,16)}, {vr(V2[b^1],4)}, {vr(SB+8,8)}, v2")
            e(f"ds_read_b128 {vr(V2[b^1],4)}, v4 offset:{(u+1)*KT + VG}")
            exy(SA, [2, 3, 4])
            e(f"{MFMA} {vr(SB,16)}, {vr(KB[b],4)}, {vr(QB,4)}, {vr(CB,16)}")
            e(f"ds_read_b128 {vr(KB[b],4)}, v3 offset:{(u+2)*KT}")
            exy(SA, [5, 6, 7, 8, 9])
            e(f"{SMF} {vr(OA,16)}, {vr(V1[b],4)}, {vr(SA,8)}, v2")
            e("s_waitcnt lgkmcnt(2)")
            if u == U-1: e("s_sub_u32 s53, s53, 1")
            exy(SA, range(10, 16))
            exy(SB, [0, 1])
            e(f"{SMF} {vr(OA,16)}, {vr(V2[b],4)}, {vr(SA+8,8)}, v2")
            if u == U-1: e("s_cmp_lg_u32 s53, 0")
            exy(SB, [2, 3, 4])
            e(f"{MFMA} {vr(SA,16)}, {vr(KB[b^1],4)}, {vr(QA,4)}, {vr(CA,16)}")
            exy(SB, [5, 6, 7, 8, 9])
            e(f"{SMF} {vr(OB,16)}, {vr(V1[b],4)}, {vr(SB,8)}, v2")
            e(f"ds_read_b128 {vr(V1[b],4)}, v4 offset:{(u+2)*KT}")
            if u == U-1:
                e(f"v_add_u32 v3, {U*KT}, v3\nv_add_u32 v4, {U*KT}, v4")
            exy(SB, range(10, 16))
        else:
            P = cfg.get("pv1", 14)
            exy(SA, [0, 1])
            e(f"{SMF} {vr(OB,16)}, {vr(V2[b^1],4)}, {vr(SB+8,8)}, v2")
            e(f"ds_read_b128 {vr(V2[b^1],4)}, v4 offset:{(u+1)*KT + VG}")
            exy(SA, [2, 3, 4])
            e(f"{MFMA} {vr(SB,16)}, {vr(KB[b],4)}, {vr(QB,4)}, {vr(CB,16)}")
            e(f"ds_read_b128 {vr(KB[b],4)}, v3 offset:{(u+2)*KT}")
            exy(SA, range(5, P+1))
            e(f"{SMF} {vr(OA,16)}, {vr(V1[b],4)}, {vr(SA,8)}, v2")
            e("s_waitcnt lgkmcnt(2)")
            if u == U-1: e("s_sub_u32 s53, s53, 1")
            exy(SA, range(P+1, 16))
            exy(SB, [0, 1])
            e(f"{SMF} {vr(OA,16)}, {vr(V2[b],4)}, {vr(SA+8,8)}, v2")
            if u == U-1: e("s_cmp_lg_u32 s53, 0")
            exy(SB, [2, 3, 4])
            e(f"{MFMA} {vr(SA,16)}, {vr(KB[b^1],4)}, {vr(QA,4)}, {vr(CA,16)}")
            exy(SB, range(5, P+1))
            e(f"{SMF} {vr(OB,16)}, {vr(V1[b],4)}, {vr(SB,8)}, v2")
            e(f"ds_read_b128 {vr(V1[b],4)}, v4 offset:{(u+2)*KT}")
            if u == U-1:
                e(f"v_add_u32 v3, {U*KT}, v3\nv_add_u32 v4, {U*KT}, v4")
            exy(SB, range(P+1, 16))
    e("s_cbranch_scc1 L_loop")
    e("s_cmp_ge_u32 s51, 2\ns_cbranch_scc1 L_fin")
    e("s_cmp_eq_u32 s51, 0\ns_cselect_b32 s53, 2, 4\ns_cselect_b32 s55, 15, -1\ns_cselect_b32 s56, 4, 68\ns_cselect_b32 s51, 1, 3")
    lds_wait(e, 4, "s55", "s56")
    e("s_branch L_loop")
    e("L_fin:")
    e(f"{SMF} {vr(OB,16)}, {vr(V2[1],4)}, {vr(SB+8,8)}, v2")
    stamp(e, 7)
    T1, T2 = CA, CA + 8
    e(f"s_add_u32 s60, s50, {WS_O}\nv_rcp_f32 v8, v{OA+8}\ns_mov_b32 s54, {f2h(2.0**20)}")
    for k in range(8): e(f"v_mul_f32 v{T1+k}, v8, v{OA+k}")
    e(f"v_mul_f32 v8, s54, v{OA+8}\nv_mov_b32 v12, 0\nv_mov_b32 v13, 0")
    e(f"v_rcp_f32 v10, v{OB+8}\nv_mul_f32 v9, s54, v{OB+8}")
    for k in range(4): e(f"v_pk_mul_f32 {vr(T2+2*k,2)}, {vr(OB+2*k,2)}, v[10:11] op_sel_hi:[1,0]")
    e("v_pk_mul_f32 v[8:9], v[8:9], v[12:13]")
    for k in range(8): e(f"v_cvt_pk_bf16_f32 v{CB+k}, v{T1+2*k}, v{T1+2*k+1}\nv_pk_fma_f32 v[8:9], {vr(T1+2*k,2)}, v[12:13], v[8:9]")
    for k in range(4): e(f"v_min_u32 v{CB+k}, -2, v{CB+k}")
    e("v_cmp_u_f32 vcc, v8, v9")
    for k in range(4): e(f"v_min_u32 v{CB+4+k}, -2, v{CB+4+k}")
    e("s_cmp_eq_u32 s51, 2\ns_cbranch_scc1 L_pub\ns_cbranch_vccnz L_fallback")
    e("L_pub:")
    e(f"buffer_store_dwordx4 {vr(CB,4)}, v6, s[40:43], s60 offen sc1")
    e(f"buffer_store_dwordx4 {vr(CB+4,4)}, v6, s[40:43], s60 offen offset:1024 sc1")
    lds_arrive(e, 8, 1)
    stamp(e, 8)
    e("s_branch L_end")

    e("L_fallback:")
    e("s_waitcnt lgkmcnt(0)")
    e("s_mov_b32 s51, 2\ns_mov_b32 s52, 0\ns_mov_b32 s53, 64\nv_mov_b32 v3, v6\nv_mov_b32 v8, 0xff800000\nv_mov_b32 v9, 0xff800000")
    for k in range(16): e(f"v_mov_b32 v{OA+k}, 0\nv_mov_b32 v{OB+k}, 0")
    e("L_mx:")
    e(f"ds_read_b128 {vr(KB[0],4)}, v3\nv_add_u32 v3, {KT}, v3\ns_waitcnt lgkmcnt(0)")
    e(f"{MFMA} {vr(SA,16)}, {vr(KB[0],4)}, {vr(QA,4)}, 0")
    e(f"{MFMA} {vr(SB,16)}, {vr(KB[0],4)}, {vr(QB,4)}, 0")
    e("s_nop 11")
    maxtree(SA, 8, False); maxtree(SB, 9, False)
    e("s_sub_u32 s53, s53, 1\ns_cmp_lg_u32 s53, 0\ns_cbranch_scc1 L_mx")
    e(f"ds_read_b128 {vr(KB[0],4)}, v6\ns_waitcnt vmcnt(0) lgkmcnt(0)")
    e("s_branch L_setmax")

def phase2_g(e, cfg):
    NREST = (NCH - 4*NEARLY) // 4
    assert NREST*4 + 4*NEARLY == NCH
    GSZ = 6144
    GACC, WO, HS, AF = 16, 80, 208, 240
    e("v_lshlrev_b32 v6, 4, v0")
    e(f"s_mul_i32 s49, s48, {GSZ}\ns_add_u32 s49, s49, {LG}")
    e("v_lshrrev_b32 v10, 3, v0\nv_and_b32 v11, 7, v0\nv_and_b32 v12, 2, v10\nv_lshlrev_b32 v12, 1, v12\nv_xor_b32 v12, v12, v11")
    e("s_lshl_b32 s60, s7, 7\nv_lshlrev_b32 v2, 10, v10\nv_lshl_add_u32 v2, v12, 4, v2\nv_add_u32 v2, s60, v2\nv_add_u32 v3, 7168, v2")
    e("v_bfe_u32 v12, v0, 2, 2\nv_lshrrev_b32 v13, 5, v0\nv_lshl_add_u32 v13, v13, 2, v12\nv_lshlrev_b32 v4, 7, v13")
    e("s_and_b32 s50, s48, 1\ns_lshr_b32 s51, s48, 1")
    e("v_lshrrev_b32 v12, 1, v12\nv_xor_b32 v12, s50, v12\nv_lshl_add_u32 v4, v12, 6, v4\nv_bfe_u32 v12, v0, 4, 1\nv_lshl_add_u32 v4, v12, 5, v4\nv_and_b32 v12, 3, v0\nv_lshl_add_u32 v4, v12, 3, v4")
    e("v_add_u32 v4, s49, v4\nv_xor_b32 v5, 64, v4")
    srd(e, 36, sWD, 1835008)
    srd(e, 44, sWO, 524288)
    e(f"s_mul_i32 s60, s6, 224\ns_mul_i32 s61, s48, 28\ns_add_u32 s60, s60, s61\ns_lshl_b32 s60, s60, 10\ns_add_u32 s60, s60, {WS_H}")
    e(f"s_mul_i32 s61, s51, {112*1024}\ns_add_u32 s62, s60, s61\ns_add_u32 s60, s60, {112*1024}\ns_sub_u32 s60, s60, s61")
    e("v_add_u32 v7, s62, v6\nv_add_u32 v8, s60, v6")
    e(f"s_mul_i32 s55, s48, {28*16*1024}")
    e("s_and_b32 s60, s6, 7\ns_lshl_b32 s61, s78, 1\ns_add_u32 s60, s60, s61\ns_cmp_ge_u32 s60, 7\ns_cselect_b32 s61, 7, 0\ns_sub_u32 s60, s60, s61\ns_lshl_b32 s57, s60, 12")
    e(f"s_lshl_b32 s64, s48, 10\ns_add_u32 s64, s64, {4*NEARLY*1024}")
    e(f"s_lshl_b32 s60, s6, 10\ns_lshl_b32 s61, s5, 8\ns_add_u32 s60, s60, s61\ns_lshl_b32 s61, s79, 4\ns_add_u32 s60, s60, s61\ns_lshl_b32 s61, s48, 2\ns_add_u32 s60, s60, s61\ns_add_u32 s67, s60, {WS_F+128}")
    e(f"s_lshl_b32 s61, s6, 10\ns_lshl_b32 s62, s48, 8\ns_add_u32 s61, s61, s62\ns_add_u32 s66, s61, {WS_F+128}")
    e("v_and_b32 v11, 7, v0\nv_lshlrev_b32 v11, 2, v11")
    e(f"v_add_u32 v9, s49, v6\nv_mov_b32 v1, 1\nv_mov_b32 v12, s{sN}\nv_mov_b32 v13, 0")
    for k in range(4): e(f"v_mov_b32 v{16+k}, -1")
    e("v_mov_b32 v20, 16")
    e("s_add_u32 s54, s7, 1\ns_and_b32 s54, s54, 3\nv_subrev_u32 v21, s49, v4")
    for c in range(4):
        e(f"s_add_u32 s60, s54, {c}\ns_and_b32 s60, s60, 3\ns_lshl_b32 s60, s60, 13\ns_lshl_b32 s61, s50, 15\ns_add_u32 s60, s60, s61\ns_add_u32 s60, s60, {(4*NEARLY + 44)*1024}")
        e(f"v_add_u32 v{56+2*c}, s60, v21\nv_xor_b32 v{57+2*c}, 64, v{56+2*c}")
    for a in range(1, 4):
        e(f"s_xor_b32 s60, s48, {a}\ns_mul_i32 s60, s60, {GSZ}\ns_add_u32 s{67+a}, s60, {LG + (a-1)*2048}")
    lds_wait(e, 0, 255, 68)
    e(f"s_setprio {cfg.get('gprio', 0)}")
    stamp(e, 4)
    N1 = 11; WOS = (4*NEARLY + 4*N1)*1024
    assert 40*KT <= WOS and WOS + 65536 <= CNT
    def kvrest(q0, q1):
        for q in range(q0, q1):
            e(f"s_add_u32 m0, s64, {q*4096}\ns_add_u32 s61, s64, {WS_KV + q*4096}")
            e("buffer_load_dwordx4 v6, s[40:43], s61 offen sc1 lds")
    def arrive(off, vv=1, va=14):
        e(f"s_mov_b64 exec, 1\nds_add_u32 v{va}, v{vv} offset:{off}\ns_mov_b64 exec, -1")
    def wait(off, val, va=14, vt=15, prio=True, slp=3):
        L = e.new("gw"); D = e.new("gwd")
        if prio: e("s_setprio 2")
        e(f"s_mov_b32 s62, {SPIN*8}\n{L}:")
        e(f"ds_read_b32 v{vt}, v{va} offset:{off}\ns_waitcnt lgkmcnt(0)\nv_readfirstlane_b32 s63, v{vt}\ns_sub_u32 s62, s62, 1\ns_nop 2")
        e(f"s_cmp_ge_u32 s63, {val}\ns_cbranch_scc1 {D}\ns_sleep {slp}\ns_cmp_lg_u32 s62, 0\ns_cbranch_scc1 {L}\n{D}:")
        if prio: e("s_setprio 0")
    kvrest(0, N1)
    e(f"s_lshl_b32 s58, s48, 17\ns_lshl_b32 s59, s48, 14\ns_add_u32 s59, s59, {WOS}")
    for j in range(8):
        e(f"s_add_u32 m0, s59, {j*2048}")
        e("s_nop 0" if j == 0 else "s_add_u32 s58, s58, 16384")
        e("buffer_load_dwordx4 v2, s[44:47], s58 offen lds")
        e("buffer_load_dwordx4 v3, s[44:47], s58 offen offset:1024 lds")
        if j == 3:
            e("s_waitcnt vmcnt(8)")
            arrive(4)
            stamp(e, 6)
    for t in range(4): e(f"buffer_store_dwordx4 {vr(40+4*t,4)}, v6, s[40:43], s{72+(t>>1)} offen offset:{(t&1)*1024} sc1")
    for q in range(2): e(f"buffer_store_dwordx4 v[16:19], v6, s[40:43], s74 offen offset:{q*1024} sc1")
    e("s_waitcnt vmcnt(6)")
    arrive(12)
    LQ = e.new("noh0")
    e(f"s_cmp_lg_u32 s77, 0\ns_cbranch_scc1 {LQ}")
    for t in range(4): e(f"buffer_store_dwordx4 {vr(24+4*t,4)}, v6, s[40:43], s{75+(t>>1)} offen offset:{(t&1)*1024} sc1")
    e(f"{LQ}:")
    wait(12, 4)
    for j in range(16):
        for ma in range(2):
            for tp in range(2):
                e(f"ds_read_b64_tr_b16 {vr(WO+j*8+ma*4+tp*2,2)}, v{56+(j>>2)*2+ma} offset:{(j&3)*2048+tp*1024}")
    e("s_waitcnt lgkmcnt(0)")
    arrive(12)
    e("s_waitcnt vmcnt(0)")
    e("s_mov_b64 exec, 1\nbuffer_store_dword v12, v13, s[40:43], s67 offen sc1\ns_mov_b64 exec, -1")
    wait(12, 8)
    kvrest(N1, NREST)
    e("s_waitcnt vmcnt(0)")
    arrive(4, vv=20)
    def trs(dst, j):
        for ma in range(2):
            for tp in range(2):
                e(f"ds_read_b64_tr_b16 {vr(dst+ma*4+tp*2,2)}, v{4+ma} offset:{(j%3)*2048+tp*1024}")
        e("s_waitcnt lgkmcnt(0)")
    e("s_setprio 2")
    poll(e, 11, "s66", sleep=2)
    e("s_setprio 0")
    stamp(e, 7)
    def issue(j):
        if j >= 28: return 0
        e(f"s_add_u32 m0, s49, {(j % 3)*2048}")
        if j % 4 == 0: e("s_lshl_b32 s56, s57, 4\ns_add_u32 s56, s56, s55")
        else: e("s_add_u32 s56, s56, 16384")
        e("buffer_load_dwordx4 v2, s[36:39], s56 offen lds")
        e("buffer_load_dwordx4 v3, s[36:39], s56 offen offset:1024 lds")
        for ta in range(2):
            e(f"buffer_load_dwordx4 {vr(HS+(j%4)*8+ta*4,4)}, v{7+ta}, s[40:43], s57 offen offset:{(j%4)*1024} sc1")
        if j % 4 == 3: e(f"s_add_u32 s57, s57, 4096\ns_cmp_ge_u32 s57, {7*4096}\ns_cselect_b32 s57, 0, s57")
        return 4
    cnt = {}
    for j in range(3): cnt[j] = issue(j)
    for j in range(28):
        e(f"s_waitcnt vmcnt({cnt.get(j+1,0) + cnt.get(j+2,0)})")
        dst = AF + (j & 1)*8
        trs(dst, j)
        cnt[j+3] = issue(j+3)
        for ta in range(2):
            for ma in range(2):
                a = GACC + (ta*2+ma)*16
                cc = "0" if j == 0 else vr(a,16)
                if not cfg.get("nogm"): e(f"{MFMA} {vr(a,16)}, {vr(dst+ma*4,4)}, {vr(HS+(j%4)*8+ta*4,4)}, {cc}")
    stamp(e, 11)
    e("s_setprio 2")
    srd(e, 44, sOUT, 2097152)
    e("v_and_b32 v2, 31, v0\nv_lshrrev_b32 v3, 5, v0\nv_lshlrev_b32 v2, 10, v2\nv_lshl_add_u32 v1, v3, 3, v2\nv_lshl_add_u32 v2, v3, 4, v2\nv_mov_b32 v3, v9")
    e("s_lshl_b32 s55, s6, 16\ns_lshl_b32 s60, s51, 15\ns_add_u32 s55, s55, s60\ns_lshl_b32 s60, s7, 7\ns_add_u32 s55, s55, s60\ns_lshl_b32 s60, s50, 6\ns_add_u32 s55, s55, s60")
    for q in range(4): e(f"buffer_load_dwordx2 {vr(8+2*q,2)}, v1, s[32:35], s55 offen offset:{q*16}")
    e(f"v_add_u32 v1, s68, v6\nv_add_u32 v208, s69, v6\nv_add_u32 v209, s70, v6\nv_mov_b32 v4, {CNT}\nv_mov_b32 v7, 1")
    pa = {1: 1, 2: 208, 3: 209}
    e("s_setprio 0")
    for hf in range(2):
        for a in range(1, 4):
            for q in range(2):
                e(f"ds_write_b128 v3, {vr(GACC+a*16+hf*8+q*4,4)} offset:{(a-1)*2048+q*1024}")
        e("s_waitcnt lgkmcnt(0)")
        arrive(12, vv=7, va=4); wait(12, 12 + 8*hf, va=4, vt=5)
        for a in range(1, 4):
            for q in range(2):
                e(f"ds_read_b128 {vr(GACC+a*16+hf*8+q*4,4)}, v{pa[a]} offset:{q*1024}")
        e("s_waitcnt lgkmcnt(0)")
        if hf == 0: arrive(12, vv=7, va=4); wait(12, 16, va=4, vt=5)
    e(f"s_lshl_b32 s60, s6, 1\ns_add_u32 s60, s60, s51\ns_lshl_b32 s60, s60, 5\ns_lshl_b32 s61, s50, 4\ns_add_u32 s60, s60, s61\ns_lshl_b32 s60, s60, 10\ns_add_u32 s60, s60, {WS_O}")
    for c in range(4):
        e(f"s_add_u32 s61, s54, {c}\ns_and_b32 s61, s61, 3\ns_lshl_b32 s61, s61, 12\ns_add_u32 s{56+c}, s60, s61")
    stamp(e, 8)
    wait(8, cfg.get('adone', 4), va=4, vt=5, prio=False, slp=1)
    stamp(e, 5)
    e(f"v_subrev_u32 v3, {LG}, v3\nv_subrev_u32 v1, {LG}, v1")
    SAC = 32
    def ofr(k): return 208 + 4*k if k < 12 else 64 + 4*(k-12)
    def oloads(c0, c1):
        for k in range(4*c0, 4*c1):
            e(f"buffer_load_dwordx4 {vr(ofr(k),4)}, v6, s[40:43], s{56+(k>>2)} offen offset:{(k&3)*1024} sc1")
    OE = cfg.get("oearly", 1)
    if OE == 1: oloads(0, 3)
    for a in range(1, 4):
        for k in range(8): e(f"v_pk_add_f32 {vr(GACC+2*k,2)}, {vr(GACC+2*k,2)}, {vr(GACC+a*16+2*k,2)}")
    if OE == 1: oloads(3, 4)
    if OE == 2: oloads(0, 4)
    e(f"s_mov_b32 s60, {f2h(-math.log2(math.e))}")
    for k in range(16): e(f"v_mul_f32 v{SAC+k}, s60, v{GACC+k}")
    for k in range(16): e(f"v_exp_f32 v{SAC+k}, v{SAC+k}")
    for k in range(16): e(f"v_add_f32 v{SAC+k}, 1.0, v{SAC+k}")
    for k in range(16): e(f"v_rcp_f32 v{SAC+k}, v{SAC+k}")
    for k in range(16): e(f"v_mul_f32 v{GACC+k}, v{GACC+k}, v{SAC+k}")
    if OE == 0: oloads(0, 4)
    for k in range(16): e(f"v_mov_b64 {vr(SAC+2*k,2)}, 0")
    e(f"s_mov_b32 s62, {SPIN}\ns_mov_b32 s61, 15")
    e("L_oloop:")
    for c in range(4):
        LN = e.new("onext"); LR = e.new("oretry"); LG_ = e.new("ogo"); LW = e.new("owaited")
        e(f"s_bitcmp1_b32 s61, {c}\ns_cbranch_scc0 {LN}")
        e("s_bcnt1_i32_b32 s63, s61")
        for n in (4, 3, 2):
            e(f"s_cmp_eq_u32 s63, {n}\ns_waitcnt vmcnt({4*(n-1)})\ns_cbranch_scc1 {LW}")
        e(f"s_waitcnt vmcnt(0)\n{LW}:")
        b = ofr(4*c)
        e(f"v_max3_u32 v5, v{b}, v{b+1}, v{b+2}\nv_max3_u32 v7, v{b+3}, v{b+4}, v{b+5}")
        for k in range(6, 14, 4): e(f"v_max3_u32 v5, v5, v{b+k}, v{b+k+1}\nv_max3_u32 v7, v7, v{b+k+2}, v{b+k+3}")
        e(f"v_max3_u32 v5, v5, v{b+14}, v{b+15}\nv_max_u32 v5, v5, v7\nv_cmp_eq_u32 vcc, -1, v5\ns_nop 4\ns_cbranch_vccnz {LR}")
        e(f"{LG_}:")
        stamp(e, 9)
        e(f"s_bitset0_b32 s61, {c}")
        for k in range(4*c, 4*c+4):
            for ma in (1, 0):
                a = SAC + ma*16
                e(f"{MFMA} {vr(a,16)}, {vr(WO+k*8+ma*4,4)}, {vr(ofr(k),4)}, {vr(a,16)}")
        if c < 3: e("s_cmp_eq_u32 s61, 0\ns_cbranch_scc1 L_odone")
        e(f"{LN}:")
        e2 = Asm()
        e2(f"{LR}:\ns_sub_u32 s62, s62, 1\ns_cmp_le_i32 s62, 0\ns_cbranch_scc1 {LG_}")
        if cfg.get("osleep"): e2(f"s_sleep {cfg['osleep']}")
        for k in range(4*c, 4*c+4):
            e2(f"buffer_load_dwordx4 {vr(ofr(k),4)}, v6, s[40:43], s{56+(k>>2)} offen offset:{(k&3)*1024} sc1")
        e2(f"s_branch {LN}")
        OOL.append(e2.text())
    e("s_cmp_lg_u32 s61, 0\ns_cbranch_scc1 L_oloop")
    e("L_odone:")
    stamp(e, 10)
    XF = 80
    e("s_mov_b32 s60, 0xffff0000")
    for k in range(5): e(f"v_lshlrev_b32 v{XF+2*k}, 16, v{8+k}\nv_and_b32 v{XF+1+2*k}, s60, v{8+k}")
    for q in range(4): e(f"ds_write_b128 v3, {vr(SAC+16+4*q,4)} offset:{q*1024}")
    for k in range(5, 8): e(f"v_lshlrev_b32 v{XF+2*k}, 16, v{8+k}\nv_and_b32 v{XF+1+2*k}, s60, v{8+k}")
    for k in range(8): e(f"v_pk_fma_f32 {vr(XF+2*k,2)}, {vr(SAC+2*k,2)}, {vr(GACC+2*k,2)}, {vr(XF+2*k,2)}")
    e("s_waitcnt lgkmcnt(0)\ns_barrier")
    for q in range(4): e(f"ds_read_b128 {vr(96+4*q,4)}, v1 offset:{q*1024}")
    for hf in range(2):
        e(f"s_waitcnt lgkmcnt({2 - 2*hf})")
        for k in range(4*hf, 4*hf+4): e(f"v_pk_fma_f32 {vr(XF+2*k,2)}, {vr(96+2*k,2)}, {vr(GACC+2*k,2)}, {vr(XF+2*k,2)}")
        for k in range(4*hf, 4*hf+4): e(f"v_cvt_pk_bf16_f32 v{112+k}, v{XF+2*k}, v{XF+2*k+1}")
        e("s_nop 1")
        e(f"v_permlane32_swap_b32 v{112+4*hf}, v{114+4*hf}\nv_permlane32_swap_b32 v{113+4*hf}, v{115+4*hf}")
        e(f"buffer_store_dwordx4 {vr(112+4*hf,4)}, v2, s[44:47], s55 offen offset:{32*hf} {cfg.get('ost','')}")

def build(cfg):
    global STAMP
    STAMP = cfg.get("stamp", 0)
    if cfg.get("ks"): KS.extend(int(x) for x in cfg["ks"].split("_"))
    e = Asm()
    hdr = open("cdna_kernels/" + NAME + ".s.ref").read().split("; Override launch")[0]
    kn = NAME + "_kernel"
    out = hdr
    if cfg.get("list"):
        out += f"; @launch kernel={kn} grid=(256,1,1) block=(512,1,1) lds=163840\n"
    else:
        out += "; @launch grid=(256,1,1) block=(512,1,1) lds=163840\n"
    out += '.amdgcn_target "amdgcn-amd-amdhsa--gfx950"\n.text\n'
    e(f".globl {kn}\n.p2align 8\n.type {kn},@function\n{kn}:")
    e("s_cmp_ge_u32 s2, 256\ns_cbranch_scc1 L_done")
    e("s_load_dwordx8 s[8:15], s[0:1], 0\ns_load_dwordx16 s[16:31], s[0:1], 32")
    e("v_lshrrev_b32 v1, 6, v0\nv_and_b32 v0, 63, v0\nv_readfirstlane_b32 s3, v1")
    if STAMP:
        for k in range(NST): e(f"s_mov_b32 s{80+k}, 0")
        stamp(e, 0)
    e("s_and_b32 s60, s2, 3\ns_lshl_b32 s60, s60, 3\ns_bfe_u32 s61, s2, 0x30003\ns_add_u32 s6, s60, s61")
    e("s_lshr_b32 s78, s2, 6\ns_lshr_b32 s79, s2, 7\ns_bfe_u32 s60, s2, 0x10002\ns_lshl_b32 s60, s60, 1\ns_and_b32 s61, s78, 1\ns_add_u32 s5, s60, s61")
    e("s_lshl_b32 s7, s79, 2\ns_add_u32 s7, s7, s5")
    startup_loads(e)
    e("s_cmp_ge_u32 s3, 4\ns_cbranch_scc1 L_compute")
    p1_helper(e, cfg)
    phase2_a(e, cfg)
    e("L_compute:")
    e("s_sub_u32 s48, s3, 4")
    p1_compute(e, cfg)
    phase2_g(e, cfg)
    e("L_end:")
    endpgm(e)
    e("L_done:")
    e("s_endpgm")
    for blk in OOL: e(blk)
    out += e.text()
    out += '.section .rodata,"a"\n' + kd(kn, 256, 102)
    return out

if __name__ == "__main__":
    cfg = {}
    dst = sys.argv[1] if len(sys.argv) > 1 else "cdna_kernels/" + NAME + ".s"
    for a in sys.argv[2:]:
        k, v = a.split("="); cfg[k] = int(v) if v.isdigit() else v
    open(dst, "w").write(build(cfg))
    print("wrote", dst)
```
